```python
import torch

def _softmax(x, axis=-1):
    return torch.softmax(x, dim=axis)
def _gelu(x):
    return torch.nn.functional.gelu(x, approximate="tanh")
def _silu(x):
    return torch.nn.functional.silu(x)
def _sigmoid(x):
    return torch.sigmoid(x)
def _layernorm(x, axis=-1, eps=1e-5):
    m = x.mean(dim=axis, keepdim=True)
    v = x.var(dim=axis, keepdim=True, unbiased=False)
    return (x - m) / torch.sqrt(v + eps)
def _scatter_add(tgt, idx, src, axis=0):
    return tgt.clone().index_add_(axis, idx, src)
def _segment_sum(src, seg, n):
    out = torch.zeros((n,) + src.shape[1:], dtype=src.dtype)
    return out.index_add_(0, seg, src)
def _pad(x, pw):
    flat = tuple(v for pair in reversed(pw) for v in pair)
    return torch.nn.functional.pad(x, flat)

kernel_name = 'interleave_layers__linear_kernel_hedgehog__mixer_channel_mlp__prompt'

def setup_inputs():

    _w = (lambda a: (lambda t: t.to(torch.bfloat16) if t.is_floating_point() else t)(torch.as_tensor(a)))
    def _A_setup():
        B, S, D, H = 1, 2048, 640, 32
        Dh = D // H
        return {
            "x": _w((lambda *s: torch.randn(*s, dtype=torch.bfloat16) * 0.05)(B, S, D)),
            "wqkv": _w((lambda *s: torch.randn(*s, dtype=torch.bfloat16) * 0.4)(D, 3 * D)),
            "w_phi": _w((lambda *s: torch.randn(*s, dtype=torch.bfloat16) * 0.4)(H, Dh, Dh) * (Dh ** -0.5)),
            "wo": _w((lambda *s: torch.randn(*s, dtype=torch.bfloat16) * 0.05)(D, D)),
        }
    _A_in = _A_setup()

    def _B_setup():
        B, S, D, F = 1, 2048, 640, 1728
        return {
            "x": _w((lambda *s: torch.randn(*s, dtype=torch.bfloat16) * 0.05)(B, S, D)),
            "w1": _w((lambda *s: torch.randn(*s, dtype=torch.bfloat16) * 3.2)(D, F) * (D ** -0.5)),
            "b1": _w((lambda *s: torch.randn(*s, dtype=torch.bfloat16) * 1.6)(F)),
            "w2": _w((lambda *s: torch.randn(*s, dtype=torch.bfloat16) * 1.6)(F, D) * (F ** -0.5)),
            "b2": _w((lambda *s: torch.randn(*s, dtype=torch.bfloat16) * 1.6)(D)),
        }
    _B_in = _B_setup()

    return {
        "A_x": _A_in["x"],
        "A_wqkv": _A_in["wqkv"],
        "A_w_phi": _A_in["w_phi"],
        "A_wo": _A_in["wo"],
        "B_x": _B_in["x"],
        "B_w1": _B_in["w1"],
        "B_b1": _B_in["b1"],
        "B_w2": _B_in["w2"],
        "B_b2": _B_in["b2"],
    }

def reference(A_x, A_wqkv, A_w_phi, A_wo, B_x, B_w1, B_b1, B_w2, B_b2):
    def _A_ref(x, wqkv, w_phi, wo):
        B, S, D = x.shape
        H = 32; Dh = D // H
        qkv = (lambda x, *d: x.permute(*d))((x @ wqkv).reshape(B, S, 3, H, Dh), 2, 0, 3, 1, 4)
        q, k, v = qkv[0], qkv[1], qkv[2]
        pq = torch.einsum("bhsd,hdf->bhsf", q, w_phi)
        pk = torch.einsum("bhsd,hdf->bhsf", k, w_phi)
        phi_q = torch.concatenate([_softmax(pq, axis=-1), _softmax(-pq, axis=-1)], axis=-1)
        phi_k = torch.concatenate([_softmax(pk, axis=-1), _softmax(-pk, axis=-1)], axis=-1)
        kv = torch.einsum("bhsf,bhsd->bhfd", phi_k, v)
        z  = torch.einsum("bhsf->bhf", phi_k)
        num = torch.einsum("bhqf,bhfd->bhqd", phi_q, kv)
        den = torch.einsum("bhqf,bhf->bhq", phi_q, z)[..., None] + 1e-6
        o = num / den
        return (lambda x, *d: x.permute(*d))(o, 0, 2, 1, 3).reshape(B, S, D) @ wo

    def _B_ref(x, w1, b1, w2, b2):
        y = _layernorm(x, axis=-1)
        h = _gelu(torch.einsum("bsd,df->bsf", y, w1) + b1)
        return torch.einsum("bsf,fd->bsd", h, w2) + b2

    x = A_x
    x = x + _A_ref(_layernorm(x, axis=-1), A_wqkv, A_w_phi, A_wo)
    x = x + _B_ref(_layernorm(x, axis=-1), B_w1, B_b1, B_w2, B_b2)
    x = x + _A_ref(_layernorm(x, axis=-1), A_wqkv, A_w_phi, A_wo)
    x = x + _B_ref(_layernorm(x, axis=-1), B_w1, B_b1, B_w2, B_b2)
    return x
```

```python
import re

def v(i, n=1): return "v%d" % i if n == 1 else "v[%d:%d]" % (i, i + n - 1)
def a(i, n=1): return "a%d" % i if n == 1 else "a[%d:%d]" % (i, i + n - 1)
def s(i, n=1): return "s%d" % i if n == 1 else "s[%d:%d]" % (i, i + n - 1)

class Emit:
    def __init__(self):
        self.lines = []
    def __call__(self, txt):
        for ln in txt.split("\n"):
            ln = ln.strip()
            if ln:
                self.lines.append(ln if ln.endswith(":") or ln.startswith(".") else "  " + ln)
    def c(self, txt): self.lines.append("  ; " + txt)
    def label(self, l): self.lines.append(l + ":")
    def nop(self, n):
        while n > 0:
            k = min(n, 16)
            self("s_nop %d" % (k - 1)); n -= k
    def text(self): return "\n".join(self.lines) + "\n"

_reg = re.compile(r"^([vas])(\d+)$|^([vas])\[(\d+):(\d+)\]$")
def regs(op):
    op = op.strip()
    neg = op.lstrip("-")
    if neg.startswith("abs(") or neg.startswith("|"):
        neg = neg.replace("abs(", "").replace(")", "").replace("|", "")
    m = _reg.match(neg)
    if m:
        if m.group(1): return [(m.group(1), int(m.group(2)))]
        return [(m.group(3), i) for i in range(int(m.group(4)), int(m.group(5)) + 1)]
    if neg == "vcc": return [("s", "vcc")]
    if neg in ("vcc_lo", "vcc_hi"): return [("s", "vcc")]
    if neg in ("exec", "exec_lo", "exec_hi"): return [("s", "exec")]
    if neg == "m0": return [("s", "m0")]
    return []

TRANS = ("v_exp_f32", "v_log_f32", "v_rcp_f32", "v_rsq_f32", "v_sqrt_f32", "v_sin_f32", "v_cos_f32", "v_rcp_iflag_f32")

def parse(ln):
    ln = ln.split(";")[0].strip()
    if not ln or ln.endswith(":") or ln.startswith("."): return None
    parts = ln.split(None, 1)
    op = parts[0]
    rest = parts[1] if len(parts) > 1 else ""
    ops = []; depth = 0; cur = ""
    for ch in rest:
        if ch in "[(": depth += 1
        if ch in "])": depth -= 1
        if ch == "," and depth == 0: ops.append(cur.strip()); cur = ""
        else: cur += ch
    if cur.strip(): ops.append(cur.strip())
    mods = ""
    if ops:
        sp = ops[-1].split(None, 1)
        if len(sp) > 1 and not ops[-1].startswith("hwreg") and not op.startswith("s_waitcnt"):
            ops[-1] = sp[0]; mods = sp[1]
    return op, ops, mods

def mfma_passes(op):
    if "32x32x16" in op or "32x32x8" in op: return 8
    if "16x16x32" in op or "16x16x16" in op: return 4
    raise ValueError(op)

class Checker:
    def __init__(self, accum_offset=None):
        self.errs = []
        self.acc_off = accum_offset
    def norm(self, r):
        return r
    def run(self, lines, name=""):
        hist = []
        ws = 0
        vmq = []
        lgq = []
        smem_out = []
        last_valu_w = {}
        last_trans_w = {}
        last_mfma_w = {}
        last_mfma_c = {}
        last_valu_sw = {}
        last_store4 = {}
        last_m0 = -100
        last_exec_valu = -100
        def err(i, ln, msg): self.errs.append("%s:%d: %s  :: %s" % (name, i, msg, ln.strip()))
        for i, ln in enumerate(lines):
            p = parse(ln)
            if p is None:
                if ln.strip().endswith(":"):
                    pass
                continue
            op, ops, mods = p
            opb = op.replace("_e32", "").replace("_e64", "").replace("_dpp", "").replace("_sdwa", "")
            isdpp = op.endswith("_dpp") or "row_" in mods or "quad_perm" in mods
            dst = []; src = []
            kind = "other"
            if op == "s_nop":
                ws += int(ops[0], 0) + 1; continue
            if op == "s_waitcnt":
                txt = ln.split(";")[0]
                m = re.search(r"vmcnt\((\d+)\)", txt)
                if m:
                    n = int(m.group(1))
                    while len(vmq) > n: vmq.pop(0)
                m = re.search(r"lgkmcnt\((\d+)\)", txt)
                if m:
                    n = int(m.group(1))
                    if smem_out and n == 0: smem_out = []
                    if not smem_out:
                        while len(lgq) > n: lgq.pop(0)
                    if n == 0: lgq = []
                ws += 1; continue
            if op.startswith("v_mfma"):
                kind = "mfma"; dst = regs(ops[0]); src = regs(ops[1]) + regs(ops[2]) + regs(ops[3])
            elif op.startswith("v_cmp"):
                kind = "valu"; dst = regs(ops[0]); src = sum((regs(o) for o in ops[1:]), [])
                if op.startswith("v_cmpx"): dst += [("s", "exec")]
            elif op.startswith("v_readfirstlane") or op.startswith("v_readlane"):
                kind = "valu"; dst = regs(ops[0]); src = sum((regs(o) for o in ops[1:]), [])
            elif op.startswith("v_permlane") and "swap" in op:
                kind = "valu"; dst = regs(ops[0]) + regs(ops[1]); src = list(dst)
            elif op.startswith("v_"):
                kind = "valu"; dst = regs(ops[0]); k = 1
                if "_co_" in op or op.startswith("v_div_scale") or op.startswith("v_mad_u64"):
                    dst += regs(ops[1]); k = 2
                src = sum((regs(o) for o in ops[k:]), [])
                if opb in ("v_fmac_f32", "v_dot2c_f32_bf16", "v_pk_fmac_f16", "v_writelane_b32") or isdpp: src += regs(ops[0])
                if opb == "v_cndmask_b32" and len(ops) == 3: src += [("s", "vcc")]
            elif op.startswith("ds_"):
                kind = "ds"
                if op.startswith("ds_read") or op.startswith("ds_bpermute") or op.startswith("ds_swizzle") or op.startswith("ds_permute"):
                    dst = regs(ops[0]); src = sum((regs(o) for o in ops[1:]), [])
                else:
                    src = sum((regs(o) for o in ops), [])
            elif op.startswith("buffer_") or op.startswith("global_"):
                kind = "vmem"
                lds = " lds" in (" " + mods) or "_lds_" in op
                if op in ("buffer_inv", "buffer_wbl2"):
                    pass
                elif "load" in op and not lds:
                    dst = regs(ops[0]); src = sum((regs(o) for o in ops[1:]), [])
                elif "atomic" in op and "sc0" in mods:
                    if op.startswith("buffer_"):
                        dst = regs(ops[0]); src = sum((regs(o) for o in ops), [])
                    else:
                        dst = regs(ops[0]); src = sum((regs(o) for o in ops[1:]), [])
                else:
                    src = sum((regs(o) for o in ops), [])
                if lds: src += [("s", "m0")]
            elif op.startswith("s_load") or op.startswith("s_memtime") or op.startswith("s_memrealtime") or op.startswith("s_buffer_load"):
                kind = "smem"; dst = regs(ops[0]); src = sum((regs(o) for o in ops[1:]), [])
            elif op.startswith("s_"):
                kind = "salu"
                if op.startswith("s_cmp") or op.startswith("s_cbranch") or op.startswith("s_branch") or op in ("s_barrier", "s_endpgm", "s_sleep", "s_setprio") or op.startswith("s_bitcmp"):
                    src = sum((regs(o) for o in ops), [])
                else:
                    dst = regs(ops[0]) if ops else []; src = sum((regs(o) for o in ops[1:]), [])
                    if "saveexec" in op: dst += [("s", "exec")]; src += [("s", "exec")]
            touched = set(src) | set(dst)
            for d, l2 in vmq:
                if d & touched: err(i, ln, "touches reg of outstanding VMEM load (%s)" % l2.strip())
            for d, l2 in lgq:
                if d & touched: err(i, ln, "touches reg of outstanding LDS op (%s)" % l2.strip())
            for d, l2 in smem_out:
                if d & touched: err(i, ln, "touches reg of outstanding SMEM load (%s)" % l2.strip())
            def need(tbl, r, n, msg):
                if r in tbl:
                    w = tbl[r][0] if isinstance(tbl[r], tuple) else tbl[r]
                    if ws - w - 1 < n: err(i, ln, "%s: reg %s has %d wait states, need %d" % (msg, r, ws - w - 1, n))
            if kind == "mfma":
                dt = tuple(regs(ops[0])); ct = tuple(regs(ops[3]))
                for r in src: need(last_valu_w, r, 2, "VALU->MFMA")
                for r in regs(ops[1]) + regs(ops[2]):
                    if r in last_mfma_w:
                        w, ps, _ = last_mfma_w[r]; n = {4: 8, 8: 12}[ps]
                        if ws - w - 1 < n: err(i, ln, "MFMA D->A/B %s %d<%d" % (r, ws - w - 1, n))
                for r in ct:
                    if r in last_mfma_w:
                        w, ps, d0 = last_mfma_w[r]
                        if d0 == ct and ps == mfma_passes(op): continue
                        n = {4: 6, 8: 10}[ps]
                        if ws - w - 1 < n: err(i, ln, "MFMA D->C overlap %s %d<%d" % (r, ws - w - 1, n))
                for r in dt:
                    if r in last_mfma_w and r not in ct:
                        w, ps, d0 = last_mfma_w[r]
                        n = {4: 8, 8: 12}[ps]
                        if ws - w - 1 < n and d0 != dt: err(i, ln, "MFMA D WAW %s" % (r,))
                if ws - last_exec_valu - 1 < 4: err(i, ln, "VALU exec write -> MFMA")
            if kind in ("valu", "vmem", "ds"):
                chk = (src + dst) if kind == "valu" else (src + dst)
                for r in chk:
                    if r in last_mfma_w:
                        w, ps, _ = last_mfma_w[r]; n = {4: 8, 8: 12}[ps]
                        if ws - w - 1 < n: err(i, ln, "MFMA D->%s %s %d<%d" % (kind, r, ws - w - 1, n))
            if kind == "valu":
                for r in dst:
                    if r in last_mfma_c:
                        w, ps = last_mfma_c[r]; n = {4: 3, 8: 7}[ps]
                        if ws - w - 1 < n: err(i, ln, "MFMA C WAR %s" % (r,))
                    need(last_store4, r, 2, "wide store data WAR")
                if opb not in TRANS:
                    for r in src: need(last_trans_w, r, 1, "trans->VALU")
                if op.startswith("v_readfirstlane") or op.startswith("v_readlane"):
                    for r in regs(ops[1]): need(last_valu_w, r, 1, "VALU->readlane")
                    if len(ops) > 2:
                        for r in regs(ops[2]): need(last_valu_sw, r, 4, "VALU sgpr->lane select")
                if op.startswith("v_permlane"):
                    for r in src: need(last_valu_w, r, 2, "VALU->permlane")
                if isdpp:
                    for r in src: need(last_valu_w, r, 2, "VALU->DPP")
                    if ws - last_exec_valu - 1 < 5: err(i, ln, "VALU exec->DPP")
                for r in src:
                    if r[0] == "s" and r[1] != "exec": need(last_valu_sw, r, 2, "VALU sgpr->VALU const")
            if kind == "vmem":
                for r in src:
                    if r[0] == "s": need(last_valu_sw, r, 5, "VALU sgpr->VMEM")
                if ("s", "m0") in src and ws - last_m0 - 1 < 1: err(i, ln, "M0 write -> LDS DMA")
            if kind in ("vmem", "ds", "smem"):
                for r in dst: need(last_store4, r, 1, "wide store data WAR (mem)")
            if kind == "valu":
                for r in dst:
                    if r[0] in "va":
                        last_valu_w[r] = ws
                        if opb in TRANS: last_trans_w[r] = ws
                        else: last_trans_w.pop(r, None)
                        last_mfma_w.pop(r, None)
                    else:
                        last_valu_sw[r] = ws
                        if r[1] == "exec": last_exec_valu = ws
            if kind == "mfma":
                ps = mfma_passes(op); dt = tuple(regs(ops[0]))
                for r in dt: last_mfma_w[r] = (ws, ps, dt); last_valu_w.pop(r, None); last_trans_w.pop(r, None)
                for r in regs(ops[3]): last_mfma_c[r] = (ws, ps)
            if kind == "salu":
                for r in dst:
                    if r == ("s", "m0"): last_m0 = ws
                    last_valu_sw.pop(r, None)
            if kind == "vmem":
                vmq.append((set(dst), ln))
                if len(vmq) > 63: err(i, ln, "vmcnt overflow (>63 outstanding) - stalls")
                if "store" in op and ("x3" in op or "x4" in op):
                    for r in regs(ops[0] if op.startswith("buffer_") else ops[1]): last_store4[r] = ws
                for r in dst: last_valu_w.pop(r, None); last_mfma_w.pop(r, None); last_trans_w.pop(r, None)
            if kind == "ds":
                lgq.append((set(dst), ln))
                for r in dst: last_valu_w.pop(r, None); last_mfma_w.pop(r, None); last_trans_w.pop(r, None)
            if kind == "smem":
                smem_out.append((set(dst), ln))
            if op == "s_endpgm":
                vmq = []; lgq = []; smem_out = []
            ws += 1
        return self.errs
```

```python
import struct
from asmlib import *

NAME = "interleave_layers__linear_kernel_hedgehog__mixer_channel_mlp__prompt"
import os as _os
WQF = 0x0000000
W1F = 0x0280000
W2F = 0x04C0000
WOF = 0x0700000
XB  = [0x0800000] * 4
XSTEP = 0
OB  = [0x0A80000] * 2
HB  = [0x0D00000] * 2
T0 = 0x0A80000; TBYTES = 0x980000
STB = [0x1400000] * 4
KVB = [0x1420000, 0x1450000]
CNT = 0x1480000
FLG = 0x1482000
Z0 = 0x1420000; ZBYTES = 0x63000
GOB = 0x1490000
CSQ = 0x1500000
CS1 = 0x1540000
TICK = 0x1484000
PROFB = 0x1600000
SINGLE = int(_os.environ.get("SINGLE", "1"))
WS_BYTES = 0x2000000
if not SINGLE:
    XB = [0x0800000, 0x2000000, 0x2300000, 0x2600000]; XB = [0x2000000, 0x2300000, 0x2600000, 0x2900000]; XSTEP = 0x300000
    OB = [0x0A80000, 0x2C00000]; HB = [0x0D00000, 0x3000000]
    STB = [0x3800000, 0x3820000, 0x3840000, 0x3860000]
    WS_BYTES = 0x4000000
XP = 80 * 256
HP = 224 * 256
LOG2E = 0x3fb8aa3b
OOB = 0x80000000

def f32(x):
    return struct.unpack("<I", struct.pack("<f", x))[0]

def srd(e, d, base, size):
    e("s_mov_b32 %s, %s" % (s(d), s(base)))
    e("s_and_b32 %s, %s, 0xffff" % (s(d + 1), s(base + 1)))
    e("s_mov_b32 %s, 0x%x" % (s(d + 2), size))
    e("s_mov_b32 %s, 0x20000" % s(d + 3))

class VM:
    def __init__(self, e):
        self.e = e; self.vm = []; self.lg = []
    def vmem(self, txt, tag=None):
        self.e(txt); self.vm.append(tag)
    def lds(self, txt, tag=None):
        self.e(txt); self.lg.append(tag)
    def _n(self, q, tags):
        idx = -1
        for i, t in enumerate(q):
            if t in tags: idx = i
        return None if idx < 0 else len(q) - 1 - idx
    def wait(self, vm=(), lg=()):
        parts = []
        if vm:
            n = self._n(self.vm, set(vm))
            if n is not None:
                n = min(n, 63)
                parts.append("vmcnt(%d)" % n)
                self.vm = self.vm[len(self.vm) - n:] if n > 0 else []
        if lg:
            n = self._n(self.lg, set(lg))
            if n is not None:
                n = min(n, 15)
                parts.append("lgkmcnt(%d)" % n)
                self.lg = self.lg[len(self.lg) - n:] if n > 0 else []
        if parts: self.e("s_waitcnt " + " ".join(parts))
    def wait_all(self, vm=True, lg=True):
        parts = []
        if vm: parts.append("vmcnt(0)"); self.vm = []
        if lg: parts.append("lgkmcnt(0)"); self.lg = []
        self.e("s_waitcnt " + " ".join(parts))

def header(e, name):
    e(".globl %s" % name)
    e(".p2align 8")
    e(".type %s,@function" % name)
    e.label(name)

def descriptor(name, nv, acc_off, ns=102):
    return """.section .rodata,"a"
.p2align 6
.amdhsa_kernel %s
  .amdhsa_next_free_vgpr %d
  .amdhsa_next_free_sgpr %d
  .amdhsa_accum_offset %d
  .amdhsa_group_segment_fixed_size 0
  .amdhsa_kernarg_size 96
  .amdhsa_user_sgpr_count 2
  .amdhsa_user_sgpr_kernarg_segment_ptr 1
  .amdhsa_system_sgpr_workgroup_id_x 1
.end_amdhsa_kernel
.text
""" % (name, nv, ns, acc_off)

def xlane_sum_g(e, r, t):
    e("v_mov_b32 %s, %s" % (v(t), v(r)))
    e("s_nop 1")
    e("v_permlane16_swap_b32 %s, %s" % (v(t), v(r)))
    e("s_nop 1")
    e("v_add_f32 %s, %s, %s" % (v(r), v(r), v(t)))
    e("v_mov_b32 %s, %s" % (v(t), v(r)))
    e("s_nop 1")
    e("v_permlane32_swap_b32 %s, %s" % (v(t), v(r)))
    e("s_nop 1")
    e("v_add_f32 %s, %s, %s" % (v(r), v(r), v(t)))

def xlane_sum_32(e, r, t):
    e("v_mov_b32 %s, %s" % (v(t), v(r)))
    e("s_nop 1")
    e("v_permlane32_swap_b32 %s, %s" % (v(t), v(r)))
    e("s_nop 1")
    e("v_add_f32 %s, %s, %s" % (v(r), v(r), v(t)))

def emit_xout(e, vm, val, t, vOff, srdOut, sOffOut, tile_stride, vSt, srdWs, sOffSt, do_stats=True, sc=""):
    pk = t
    for i in range(10):
        e("v_cvt_pk_bf16_f32 %s, %s, %s" % (v(pk + i), v(val + 2 * i), v(val + 2 * i + 1)))
    for T in range(5):
        vm.vmem("buffer_store_dwordx2 %s, %s, %s, %s offen offset:%d%s" % (v(pk + 2 * T, 2), v(vOff), s(srdOut, 4), s(sOffOut), T * tile_stride, sc), "xst")
    if not do_stats: return
    emit_stats(e, vm, val, pk, t + 10, vSt, srdWs, sOffSt, sc)

def emit_stats(e, vm, val, pk, t, vSt, srdWs, sOffSt, sc=""):
    for i in range(10):
        e("v_lshlrev_b32 %s, 16, %s" % (v(val + 2 * i), v(pk + i)))
        e("v_and_b32 %s, 0xffff0000, %s" % (v(val + 2 * i + 1), v(pk + i)))
    sm = t; t2 = t + 1
    assert (t + 2) % 2 == 0
    e("v_pk_add_f32 %s, %s, %s" % (v(t + 2, 2), v(val, 2), v(val + 2, 2)))
    e("v_pk_add_f32 %s, %s, %s" % (v(t + 4, 2), v(val + 4, 2), v(val + 6, 2)))
    for i in range(4, 10, 2):
        e("v_pk_add_f32 %s, %s, %s" % (v(t + 2, 2), v(t + 2, 2), v(val + 2 * i, 2)))
        e("v_pk_add_f32 %s, %s, %s" % (v(t + 4, 2), v(t + 4, 2), v(val + 2 * i + 2, 2)))
    e("v_pk_add_f32 %s, %s, %s" % (v(t + 2, 2), v(t + 2, 2), v(t + 4, 2)))
    e("v_add_f32 %s, %s, %s" % (v(sm), v(t + 2), v(t + 3)))
    xlane_sum_g(e, sm, t2)
    e("v_mul_f32 %s, 0x%x, %s" % (v(sm), f32(1.0 / 80), v(sm)))
    m2 = t + 2
    e("v_sub_f32 %s, %s, %s" % (v(val), v(val), v(sm)))
    e("v_mul_f32 %s, %s, %s" % (v(m2), v(val), v(val)))
    e("v_sub_f32 %s, %s, %s" % (v(val + 1), v(val + 1), v(sm)))
    e("v_mul_f32 %s, %s, %s" % (v(m2 + 1), v(val + 1), v(val + 1)))
    for i in range(2, 20):
        e("v_sub_f32 %s, %s, %s" % (v(val + i), v(val + i), v(sm)))
        e("v_fmac_f32 %s, %s, %s" % (v(m2 + (i & 1)), v(val + i), v(val + i)))
    e("v_add_f32 %s, %s, %s" % (v(m2), v(m2), v(m2 + 1)))
    xlane_sum_g(e, m2, t2)
    e("v_mov_b32 %s, %s" % (v(m2 + 1), v(m2)))
    e("v_mov_b32 %s, %s" % (v(m2), v(sm)))
    vm.vmem("buffer_store_dwordx2 %s, %s, %s, %s offen%s" % (v(m2, 2), v(vSt), s(srdWs, 4), s(sOffSt), sc), "st")
```

```python
from common import *
import os
PROF = False
FORCE_SLOW = False
FAKEX = False
TOUCHP = int(os.environ.get("TOUCHP", 4))
TGRAN = int(os.environ.get("TGRAN", 64))
WT = os.environ.get("WT", " sc0 sc1")
SPIN_MAX = 0x20000
SLEEP = int(os.environ.get("SLEEP", 0))
NOINV = int(os.environ.get("NOINV", 1))

def gen_prologue(e, G):
    S_WS, S_WAVE, S_FAIL, S_PURE, MW = G.S_WS, G.S_WAVE, G.S_FAIL, G.S_PURE, G.MW
    S_SRC = 64; S_PHI = 68; S_DBG = G.S_DBG; S_LEAD = G.S_LEAD
    vm = VM(e)
    W = s(S_WAVE)
    def pstamp(i):
        if PROF:
            e("s_memrealtime %s" % s(80 + 2 * i, 2)); e("s_waitcnt lgkmcnt(0)")
    e("s_cmp_ge_u32 s2, 256")
    e("s_cbranch_scc1 main_done")
    e("s_load_dwordx8 s[4:11], s[0:1], 0")
    e("s_load_dwordx4 s[12:15], s[0:1], 40")
    e("s_load_dwordx8 s[44:51], s[0:1], 56")
    e("s_load_dwordx2 s[52:53], s[0:1], 88")
    if PROF: e("s_memrealtime s[80:81]")
    e("s_getreg_b32 s42, hwreg(HW_REG_XCC_ID)")
    e("v_and_b32 v1, 63, v0")
    e("v_lshrrev_b32 v2, 6, v0")
    e("v_and_b32 v3, 15, v1")
    e("v_readfirstlane_b32 %s, v2" % W)
    e("v_lshrrev_b32 v4, 4, v1")
    e("v_lshlrev_b32 v5, 4, v1")
    e("v_add_u32 v6, 0x10000, v5")
    e("s_and_b32 s42, s42, 7")
    if FAKEX: e("s_mov_b32 s42, 0")
    e("s_mov_b32 %s, 0" % s(S_FAIL))
    e("v_and_b32 v8, 7, v1")
    e("v_lshrrev_b32 v9, 3, v1")
    e("v_mul_u32_u24 v10, 1280, v8")
    e("v_lshlrev_b32 v11, 4, v9")
    e("v_add_u32 v10, v10, v11")
    e("v_mov_b32 v7, 0x%x" % OOB)
    e("v_cmp_gt_u32 s[54:55], 2, v9")
    e("v_add_u32 v11, 128, v10")
    e("s_mul_i32 s56, s2, %d" % (8 * 1280))
    e("v_cndmask_b32 v11, v7, v11, s[54:55]")
    e("s_mul_i32 s57, %s, 160" % W)
    e("s_add_u32 s56, s56, s57")
    e("s_waitcnt lgkmcnt(0)")

    srd(e, G.S_X, 4, 2048 * 1280)
    srd(e, S_WS, 52, WS_BYTES)
    XA = 12; XC = 16
    BF = 24; AL = 48; ACC = 72; XF = 120; T = 144
    XS = 4096; PHI = 8192
    e("s_lshl_b32 s57, s42, 7"); e("s_add_u32 s57, s57, 0x%x" % GOB)
    e("v_mov_b32 v168, 0")
    e("buffer_load_dwordx2 v[166:167], v168, %s, s57 offen sc0 sc1" % s(S_WS, 4))
    e("buffer_load_dwordx4 %s, v10, %s, s56 offen" % (v(XA, 4), s(G.S_X, 4)))
    e("buffer_load_dwordx4 %s, v11, %s, s56 offen" % (v(XC, 4), s(G.S_X, 4)))
    srd(e, G.S_B1, 14, 3456)
    srd(e, G.S_B2, 46, 1280)
    srd(e, G.S_OUT, 48, 2048 * 1280)
    srd(e, S_DBG, 50, 256)
    def a_row_voffset(pitch):
        e("v_lshrrev_b32 v21, 2, v3"); e("v_lshlrev_b32 v21, 3, v21")
        e("v_and_b32 v22, 3, v3"); e("v_add_u32 v21, v21, v22")
        e("v_mul_u32_u24 v20, %d, v21" % pitch)
        e("v_lshlrev_b32 v22, 4, v4")
        e("v_add_u32 v20, v20, v22")
    def identity_B():
        for u in range(2):
            e("v_lshrrev_b32 %s, 3, v3" % v(T))
            e("v_add_u32 %s, %d, %s" % (v(T), 2 * u, v(T)))
            e("v_cmp_eq_u32 vcc, %s, v4" % v(T))
            e("v_and_b32 %s, 1, v3" % v(T + 1))
            e("v_cmp_eq_u32 s[58:59], 1, %s" % v(T + 1))
            e("v_mov_b32 %s, 0x3f80" % v(T + 2))
            e("v_mov_b32 %s, 0x3f800000" % v(T + 3))
            e("v_cndmask_b32 %s, %s, %s, s[58:59]" % (v(T + 1), v(T + 2), v(T + 3)))
            e("v_cndmask_b32 %s, 0, %s, vcc" % (v(T + 1), v(T + 1)))
            e("v_bfe_u32 %s, v3, 1, 2" % v(T + 2))
            for q in range(4):
                e("v_cmp_eq_u32 vcc, %d, %s" % (q, v(T + 2)))
                e("s_nop 1")
                e("v_cndmask_b32 %s, 0, %s, vcc" % (v(BF + 4 * u + q), v(T + 1)))
    def touch(first, nthr):
        per = TBYTES // 256
        nl = per // TGRAN
        e("s_mul_i32 s57, s2, %d" % per); e("s_add_u32 s57, s57, 0x%x" % T0)
        e("v_subrev_u32 v37, %d, v0" % first)
        for k in range((nl + nthr - 1) // nthr):
            e("v_add_u32 v38, %d, v37" % (k * nthr))
            e("v_cmp_gt_u32 vcc, %d, v38" % nl)
            e("v_mul_u32_u24 v38, %d, v38" % TGRAN)
            e("s_nop 0")
            e("v_cndmask_b32 v38, v7, v38, vcc")
            e("buffer_load_dword v39, v38, %s, s57 offen" % s(S_WS, 4))
    L = {}; cnt = [0]
    def lab(n):
        cnt[0] += 1; L[n] = "pr_%s_%d" % (n, cnt[0]); return L[n]
    def xpart(nlater):
        e("v_lshlrev_b32 %s, 8, v9" % v(T)); e("v_lshlrev_b32 %s, 4, v8" % v(T + 1)); e("v_add_u32 %s, %s, %s" % (v(T), v(T), v(T + 1)))
        e("v_add_u32 %s, 2048, %s" % (v(T + 1), v(T)))
        e("v_cndmask_b32 %s, v7, %s, s[54:55]" % (v(T + 1), v(T + 1)))
        e("s_lshr_b32 s57, s2, 1"); e("s_mul_i32 s57, s57, %d" % XP)
        e("s_and_b32 s58, s2, 1"); e("s_lshl_b32 s58, s58, 7"); e("s_add_u32 s57, s57, s58")
        e("s_mul_i32 s58, %s, 2560" % W); e("s_add_u32 s57, s57, s58")
        e("s_add_u32 s57, s57, 0x%x" % XB[0])
        e("buffer_store_dwordx4 %s, %s, %s, s57 offen%s" % (v(XA, 4), v(T), s(S_WS, 4), WT))
        e("buffer_store_dwordx4 %s, %s, %s, s57 offen%s" % (v(XC, 4), v(T + 1), s(S_WS, 4), WT))
        for i in range(8):
            e("v_lshlrev_b32 %s, 16, %s" % (v(XF + 2 * i), v(XA + i)))
            e("v_and_b32 %s, 0xffff0000, %s" % (v(XF + 2 * i + 1), v(XA + i)))
        sm = 136; t2 = 137; pa = 138; pb = 140
        e("v_pk_add_f32 %s, %s, %s" % (v(pa, 2), v(XF, 2), v(XF + 2, 2)))
        e("v_pk_add_f32 %s, %s, %s" % (v(pb, 2), v(XF + 4, 2), v(XF + 6, 2)))
        for i in (8, 12):
            e("v_pk_add_f32 %s, %s, %s" % (v(pa, 2), v(pa, 2), v(XF + i, 2)))
            e("v_pk_add_f32 %s, %s, %s" % (v(pb, 2), v(pb, 2), v(XF + i + 2, 2)))
        e("v_pk_add_f32 %s, %s, %s" % (v(pa, 2), v(pa, 2), v(pb, 2)))
        e("v_add_f32 %s, %s, %s" % (v(sm), v(pa), v(pa + 1)))
        def red(r):
            e("s_nop 1")
            e("v_add_f32_dpp %s, %s, %s row_ror:8 row_mask:0xf bank_mask:0xf" % (v(r), v(r), v(r)))
            xlane_sum_g(e, r, t2)
        red(sm)
        e("v_mul_f32 %s, 0x%x, %s" % (v(sm), f32(1.0 / 80), v(sm)))
        for i in range(16): e("v_sub_f32 %s, %s, %s" % (v(XF + i), v(XF + i), v(sm)))
        e("v_mul_f32 %s, %s, %s" % (v(pa), v(XF), v(XF)))
        e("v_mul_f32 %s, %s, %s" % (v(pa + 1), v(XF + 8), v(XF + 8)))
        for i in range(1, 8):
            e("v_fmac_f32 %s, %s, %s" % (v(pa), v(XF + i), v(XF + i)))
            e("v_fmac_f32 %s, %s, %s" % (v(pa + 1), v(XF + 8 + i), v(XF + 8 + i)))
        e("v_cndmask_b32 %s, 0, %s, s[54:55]" % (v(pa + 1), v(pa + 1)))
        e("v_add_f32 %s, %s, %s" % (v(pa), v(pa), v(pa + 1)))
        red(pa)
        e("v_mov_b32 %s, %s" % (v(pa + 1), v(pa)))
        e("v_mov_b32 %s, %s" % (v(pa), v(sm)))
        e("v_lshlrev_b32 %s, 6, v8" % v(T))
        e("s_lshl_b32 s57, %s, 3" % W); e("s_add_u32 s57, s57, %d" % XS)
        e("v_add_u32 %s, s57, %s" % (v(T), v(T)))
        e("s_mov_b64 exec, 0xff")
        e("ds_write_b64 %s, %s" % (v(T), v(pa, 2)))
        e("s_mov_b64 exec, -1")

    def sum8(r, b):
        e("v_add_f32 %s, %s, %s" % (v(r), v(b), v(b + 1)))
        for q in range(2, 8): e("v_add_f32 %s, %s, %s" % (v(r), v(r), v(b + q)))
        xlane_sum_g(e, r, T + 11)
    def select_g(dst, base, n):
        e("v_mov_b32 %s, %s" % (v(dst), v(base)))
        for g in range(1, n):
            e("v_cmp_eq_u32 vcc, %d, v4" % g)
            e("s_nop 1")
            e("v_cndmask_b32 %s, %s, %s, vcc" % (v(dst), v(dst), v(base + g)))
    e("s_cmp_lt_u32 %s, 4" % W); e("s_cselect_b32 s43, 1, 0")
    e("s_cmp_lt_u32 s2, 240"); e("s_cselect_b32 s43, s43, 0")
    e("s_cmp_eq_u32 s43, 0")
    e("s_cbranch_scc1 pr_a_noq")
    srd(e, S_SRC, 6, 640 * 1920 * 2)
    srd(e, S_PHI, 8, 32 * 400 * 2)
    e("s_mul_i32 s60, s2, 5462"); e("s_lshr_b32 s60, s60, 16")
    e("s_mul_i32 s57, s60, 12"); e("s_sub_u32 s61, s2, s57")
    e("s_and_b32 s62, s61, 3"); e("s_lshl_b32 s62, s62, 2"); e("s_add_u32 s62, s62, %s" % W)
    e("s_lshr_b32 s61, s61, 2")
    a_row_voffset(3840)
    e("s_mul_i32 s63, s61, 1280"); e("s_mul_i32 s57, s62, 80"); e("s_add_u32 s63, s63, s57")
    e("s_mul_i32 s57, s60, %d" % (32 * 3840)); e("s_add_u32 s63, s63, s57")
    for win in range(2):
        for p in range(2):
            e("s_add_u32 s57, s63, %d" % (win * 40 + p * 4 * 3840))
            e("buffer_load_dwordx4 %s, v20, %s, s57 offen" % (v(AL + 8 * win + 4 * p, 4), s(S_SRC, 4)))
    PH = 156
    e("s_mul_i32 s57, s62, 1600")
    e("v_cmp_gt_u32 vcc, 36, v1")
    e("v_add_u32 v165, 1024, v5")
    e("buffer_load_dwordx4 %s, v5, %s, s57 offen" % (v(PH, 4), s(S_PHI, 4)))
    e("v_cndmask_b32 v165, v7, v165, vcc")
    e("buffer_load_dwordx4 %s, v165, %s, s57 offen" % (v(PH + 4, 4), s(S_PHI, 4)))
    e("s_mul_i32 s58, %s, 3072" % W); e("s_add_u32 s58, s58, %d" % PHI)
    e("v_add_u32 v164, s58, v5")
    for i in range(4): e("v_mov_b32 %s, 0" % v(T + 4 + i))
    for i in range(3): e("ds_write_b128 v164, %s offset:%d" % (v(T + 4, 4), 1024 * i))
    pstamp(1)
    e("s_waitcnt vmcnt(6)")
    e("s_branch pr_b")
    e.label("pr_a_noq")
    pstamp(1)
    e("s_waitcnt vmcnt(0)")
    e.label("pr_b")
    xpart(0)
    e("s_cmp_lt_u32 %s, 6" % W)
    e("s_cbranch_scc1 pr_nz")
    e("s_sub_u32 s57, %s, 6" % W); e("s_lshl_b32 s57, s57, 10")
    e("v_add_u32 %s, s57, v5" % v(T))
    e("s_mul_i32 s57, s2, 1664")
    e("v_add_u32 %s, s57, %s" % (v(T + 1), v(T)))
    e("v_cmp_gt_u32 vcc, 1664, %s" % v(T))
    e("s_nop 1")
    e("v_cndmask_b32 %s, v7, %s, vcc" % (v(T + 1), v(T + 1)))
    e("v_cmp_gt_u32 vcc, 0x%x, %s" % (ZBYTES, v(T + 1)))
    e("s_nop 1")
    e("v_cndmask_b32 %s, v7, %s, vcc" % (v(T + 1), v(T + 1)))
    for i in range(4): e("v_mov_b32 %s, 0" % v(T + 4 + i))
    e("s_mov_b32 s57, 0x%x" % Z0)
    e("buffer_store_dwordx4 %s, %s, %s, s57 offen%s" % (v(T + 4, 4), v(T + 1), s(S_WS, 4), WT))
    e.label("pr_nz")
    e("s_waitcnt lgkmcnt(0)")
    e("s_barrier")
    e("s_cmp_lg_u32 %s, 7" % W)
    e("s_cbranch_scc1 pr_ns")
    e("v_add_u32 %s, %d, v5" % (v(T), XS))
    e("ds_read_b128 %s, %s" % (v(T + 8, 4), v(T)))
    e("v_cmp_gt_u32 vcc, 32, v1")
    e("s_lshl_b32 s57, s2, 9"); e("s_add_u32 s57, s57, 0x%x" % STB[0])
    e("v_cndmask_b32 %s, v7, v5, vcc" % v(T + 1))
    e("s_waitcnt lgkmcnt(0)")
    e("buffer_store_dwordx4 %s, %s, %s, s57 offen%s" % (v(T + 8, 4), v(T + 1), s(S_WS, 4), WT))
    e.label("pr_ns")
    e("s_cmp_eq_u32 s43, 0")
    e("s_cbranch_scc1 pr_d")
    e("s_waitcnt vmcnt(2)")
    pstamp(2)
    e("s_cmp_eq_u32 s61, 2")
    e("s_cbranch_scc1 pr_v_ident")
    e("v_cmp_le_u32 vcc, 50, v1")
    e("v_add_u32 %s, 544, v164" % v(T))
    e("s_nop 0")
    e("v_cndmask_b32 %s, v164, %s, vcc" % (v(T + 1), v(T)))
    e("ds_write_b128 %s, %s" % (v(T + 1), v(PH, 4)))
    e("s_mov_b32 exec_hi, 0xf")
    e("ds_write_b128 %s, %s offset:1024" % (v(T), v(PH + 4, 4)))
    e("s_mov_b64 exec, -1")
    e("s_branch pr_qkv_go")
    e.label("pr_v_ident")
    e("s_mul_i32 s58, %s, 3072" % W); e("s_add_u32 s58, s58, %d" % PHI)
    e("v_and_b32 %s, 31, v1" % v(T)); e("v_mul_u32_u24 %s, 42, %s" % (v(T + 1), v(T)))
    e("v_lshrrev_b32 %s, 5, v1" % v(T + 2)); e("v_mul_u32_u24 %s, 1344, %s" % (v(T + 2), v(T + 2)))
    e("v_add_u32 %s, %s, %s" % (v(T + 1), v(T + 1), v(T + 2)))
    e("v_add_u32 %s, s58, %s" % (v(T + 1), v(T + 1)))
    e("v_mov_b32 %s, 0x3f80" % v(T + 2))
    e("s_mov_b32 exec_lo, 0xfffff"); e("s_mov_b32 exec_hi, 0xfffff")
    e("ds_write_b16 %s, %s" % (v(T + 1), v(T + 2)))
    e("s_mov_b64 exec, -1")
    e.label("pr_qkv_go")
    e("s_mul_i32 s58, %s, 3072" % W); e("s_add_u32 s58, s58, %d" % PHI)
    e("v_lshlrev_b32 %s, 3, v4" % v(T)); e("v_lshrrev_b32 %s, 2, v3" % v(T + 1)); e("v_add_u32 %s, %s, %s" % (v(T), v(T), v(T + 1)))
    e("v_mul_u32_u24 %s, 40, %s" % (v(T), v(T)))
    e("v_and_b32 %s, 1, v3" % v(T + 1))
    e("v_mul_u32_u24 %s, 1344, %s" % (v(T + 2), v(T + 1)))
    e("v_add_u32 %s, %s, %s" % (v(T), v(T), v(T + 2)))
    e("v_add_u32 %s, s58, %s" % (v(T), v(T)))
    e("v_bfe_u32 %s, v3, 1, 1" % v(T + 2)); e("v_lshlrev_b32 %s, 2, %s" % (v(T + 2), v(T + 2)))
    e("s_cmp_eq_u32 s61, 1"); e("s_cselect_b32 s59, -4, 0")
    e("v_add_u32 %s, s59, %s" % (v(T + 2), v(T + 2)))
    e("s_add_u32 s59, s58, 2688")
    e("v_mov_b32 %s, s59" % v(T + 3))
    e("s_waitcnt lgkmcnt(0)")
    for j in range(3):
        e("v_add_u32 %s, %d, %s" % (v(T + 4), 8 * j, v(T + 2)))
        e("v_cmp_gt_u32 vcc, 20, %s" % v(T + 4))
        e("v_lshlrev_b32 %s, 1, %s" % (v(T + 4), v(T + 4)))
        e("v_add_u32 %s, %s, %s" % (v(T + 4), v(T + 4), v(T)))
        e("v_cndmask_b32 %s, %s, %s, vcc" % (v(T + 4), v(T + 3), v(T + 4)))
        for win in range(2):
            e("v_cmp_eq_u32 vcc, %d, %s" % (win, v(T + 1)))
            e("s_nop 1")
            e("v_cndmask_b32 %s, %s, %s, vcc" % (v(T + 5 + win), v(T + 3), v(T + 4)))
        for win in range(2):
            for pp in range(2):
                e("ds_read_b64_tr_b16 %s, %s offset:%d" % (v(BF + 8 * j + 4 * win + 2 * pp, 2), v(T + 5 + win), pp * 160))
    e("s_waitcnt lgkmcnt(0)")
    for j in range(3):
        for p in range(2):
            e("v_mfma_f32_16x16x32_bf16 %s, %s, %s, 0" % (v(ACC + 8 * j + 4 * p, 4), v(AL + 4 * p, 4), v(BF + 8 * j, 4)))
    for j in range(3):
        for p in range(2):
            e("v_mfma_f32_16x16x32_bf16 %s, %s, %s, %s" % (v(ACC + 8 * j + 4 * p, 4), v(AL + 8 + 4 * p, 4), v(BF + 8 * j + 4, 4), v(ACC + 8 * j + 4 * p, 4)))
    e.nop(8)
    e("v_lshrrev_b32 v22, 1, v4"); e("v_lshlrev_b32 v22, 12, v22")
    e("v_and_b32 v23, 1, v4"); e("v_lshlrev_b32 v23, 9, v23"); e("v_add_u32 v22, v22, v23")
    e("v_lshlrev_b32 v23, 4, v3"); e("v_add_u32 v22, v22, v23")
    e("s_mul_i32 s63, s62, 163840"); e("s_lshl_b32 s57, s60, 13"); e("s_add_u32 s63, s63, s57"); e("s_add_u32 s63, s63, 0x%x" % WQF)
    e("s_mul_i32 s59, s61, 20"); e("s_lshr_b32 s59, s59, 3")
    for j in range(3):
        b = ACC + 8 * j
        PKR = XF + 4 * j
        for q in range(4):
            e("v_cvt_pk_bf16_f32 %s, %s, %s" % (v(PKR + q), v(b + 2 * q), v(b + 2 * q + 1)))
        src = 22
        if j != 1:
            e("s_cmp_eq_u32 s61, %d" % (0 if j == 2 else 1))
            e("s_cselect_b32 s56, 0x%x, -1" % (0x00ff00ff if j == 2 else 0xff00ff00))
            e("s_mov_b32 vcc_lo, s56"); e("s_mov_b32 vcc_hi, s56")
            e("s_nop 1")
            e("v_cndmask_b32 v23, v7, v22, vcc")
            src = 23
        e("s_add_u32 s56, s59, %d" % j)
        e("s_lshr_b32 s57, s56, 1"); e("s_lshl_b32 s57, s57, 10")
        e("s_and_b32 s56, s56, 1"); e("s_lshl_b32 s56, s56, 8"); e("s_add_u32 s57, s57, s56"); e("s_add_u32 s57, s57, s63")
        e("buffer_store_dwordx4 %s, %s, %s, s57 offen%s" % (v(PKR, 4), v(src), s(S_WS, 4), WT))
        for q in range(4):
            e("v_lshlrev_b32 %s, 16, %s" % (v(b + 2 * q), v(PKR + q)))
            e("v_and_b32 %s, 0xffff0000, %s" % (v(b + 2 * q + 1), v(PKR + q)))
        sum8(T + j, b)

    e("v_mov_b32 %s, 0" % v(T + 3))
    select_g(T + 4, T, 4)
    e("v_lshlrev_b32 %s, 2, v1" % v(T + 5))
    e("s_lshl_b32 s57, s60, 4"); e("s_add_u32 s57, s57, s62"); e("s_mul_i32 s57, s57, 3"); e("s_add_u32 s57, s57, s61")
    e("s_lshl_b32 s57, s57, 8"); e("s_add_u32 s57, s57, 0x%x" % CSQ)
    e("buffer_store_dword %s, %s, %s, s57 offen%s" % (v(T + 4), v(T + 5), s(S_WS, 4), WT))
    e.label("pr_d")
    e("s_cmp_lt_u32 %s, 3" % W)
    e("s_cbranch_scc1 pr_d_none")
    e("s_sub_u32 s56, %s, 4" % W)
    e("s_cmp_eq_u32 %s, 3" % W); e("s_cselect_b32 s56, 4, s56")
    e("s_mul_i32 s57, s2, 5"); e("s_add_u32 s56, s56, s57")
    def pair_loads(pitch, voffs):
        for i in range(2):
            for p in range(2):
                e("s_add_u32 s57, s63, %d" % (64 * i + p * 4 * pitch))
                e("buffer_load_dwordx4 %s, %s, %s, s57 offen" % (v(AL + 8 * i + 4 * p, 4), v(voffs[p]), s(S_SRC, 4)))
    e("s_cmp_lt_u32 s2, 108"); e("s_cbranch_scc1 pr_d_w1")
    e("s_cmp_lt_u32 s2, 216"); e("s_cbranch_scc1 pr_d_w2")
    srd(e, S_SRC, 10, 640 * 1280)
    e("s_sub_u32 s56, s56, 1080")
    e("s_mul_i32 s60, s56, 6554"); e("s_lshr_b32 s60, s60, 16")
    e("s_mul_i32 s57, s60, 10"); e("s_sub_u32 s61, s56, s57")
    e("s_lshl_b32 s57, s60, 5")
    for p in range(2):
        t = T
        e("v_lshrrev_b32 %s, 2, v3" % v(t)); e("v_lshlrev_b32 %s, 3, %s" % (v(t), v(t)))
        e("v_and_b32 %s, 3, v3" % v(t + 1)); e("v_add_u32 %s, %s, %s" % (v(t), v(t), v(t + 1)))
        e("v_add_u32 %s, s57, %s" % (v(t), v(t)))
        e("v_add_u32 %s, %d, %s" % (v(t), 4 * p, v(t)))
        e("v_mul_u32_u24 %s, 52429, %s" % (v(t + 1), v(t)))
        e("v_lshrrev_b32 %s, 21, %s" % (v(t + 1), v(t + 1)))
        e("v_mul_u32_u24 %s, 40, %s" % (v(t + 2), v(t + 1)))
        e("v_sub_u32 %s, %s, %s" % (v(t + 2), v(t), v(t + 2)))
        e("v_mov_b32 %s, 0" % v(t + 3))
        for lim, dl in ((16, 4), (32, -16), (36, 0)):
            e("v_cmp_le_u32 vcc, %d, %s" % (lim, v(t + 2)))
            e("s_nop 1")
            e("v_cndmask_b32 %s, %s, %d, vcc" % (v(t + 3), v(t + 3), dl))
        e("v_add_u32 %s, %s, %s" % (v(t), v(t), v(t + 3)))
        e("v_mul_u32_u24 %s, 1280, %s" % (v(t), v(t)))
        e("v_lshlrev_b32 %s, 4, v4" % v(t + 1))
        e("v_add_u32 %s, %s, %s" % (v(20 + p), v(t), v(t + 1)))
    e("s_lshl_b32 s63, s61, 7")
    pair_loads(0, [20, 21])
    e("s_branch pr_d_done")
    e.label("pr_d_w2")
    srd(e, S_SRC, 44, 1728 * 1280)
    e("s_sub_u32 s56, s56, 540")
    e("s_mul_i32 s60, s56, 6554"); e("s_lshr_b32 s60, s60, 16")
    e("s_mul_i32 s57, s60, 10"); e("s_sub_u32 s61, s56, s57")
    a_row_voffset(1280)
    e("s_mul_i32 s63, s60, %d" % (32 * 1280)); e("s_lshl_b32 s57, s61, 7"); e("s_add_u32 s63, s63, s57")
    pair_loads(1280, [20, 20])
    e("s_branch pr_d_done")
    e.label("pr_d_w1")
    srd(e, S_SRC, 12, 640 * 1728 * 2)
    e("s_mul_i32 s60, s56, 2428"); e("s_lshr_b32 s60, s60, 16")
    e("s_mul_i32 s57, s60, 27"); e("s_sub_u32 s61, s56, s57")
    a_row_voffset(3456)
    e("s_mul_i32 s63, s60, %d" % (32 * 3456)); e("s_lshl_b32 s57, s61, 7"); e("s_add_u32 s63, s63, s57")
    pair_loads(3456, [20, 20])
    e.label("pr_d_done")
    identity_B()
    e("s_waitcnt vmcnt(4)")
    e("s_branch pr_e")
    e.label("pr_d_none")
    if TOUCHP == 3:
        e("s_waitcnt vmcnt(0)")
        e("s_cmp_eq_u32 %s, 0" % W)
        e("s_cbranch_scc1 pr_e")
        touch(64, 128)
    else:
        e("s_waitcnt vmcnt(0)")
    e.label("pr_e")
    pstamp(3)
    e("s_barrier")
    pstamp(4)
    e("s_cmp_eq_u32 %s, 0" % W)
    e("s_cbranch_scc1 pr_sync")
    e("s_cmp_lg_u32 %s, 1" % W)
    e("s_cbranch_scc1 pr_noarr")
    e("s_lshr_b32 s57, s2, 3"); e("s_lshl_b32 s57, s57, 2")
    e("s_lshl_b32 s58, s42, 2"); e("s_lshl_b32 s58, 1, s58")
    e("v_mov_b32 v20, s57"); e("v_mov_b32 v21, s58")
    e("s_mov_b64 exec, 1")
    e("buffer_atomic_add v21, v20, %s, 0 offen" % s(S_DBG, 4))
    e("s_mov_b64 exec, -1")
    e.label("pr_noarr")
    if TOUCHP == 4:
        e("s_cmp_ge_u32 %s, 3" % W)
        e("s_cbranch_scc1 pr_f")
        touch(64, 128)
        e("s_branch pr_b2")
        e.label("pr_f")
    e("s_cmp_lt_u32 %s, 3" % W)
    e("s_cbranch_scc1 pr_b2")
    e("s_waitcnt vmcnt(0)")
    for i in range(2):
        for p in range(2):
            for u in range(2):
                e("v_mfma_f32_16x16x32_bf16 %s, %s, %s, 0" % (v(ACC + 16 * i + 8 * u + 4 * p, 4), v(AL + 8 * i + 4 * p, 4), v(BF + 4 * u, 4)))
    e.nop(8)
    e("s_cmp_lt_u32 s2, 108"); e("s_cbranch_scc1 pr_f_w1")
    e("s_cmp_lt_u32 s2, 216")
    e("s_cselect_b32 s62, 54, 20")
    e("s_mov_b32 s63, 0x%x" % W2F); e("s_cselect_b32 s63, s63, 0x%x" % WOF)
    for i in range(2):
        for u in range(2):
            b = ACC + 16 * i + 8 * u
            for q in range(4):
                e("v_cvt_pk_bf16_f32 %s, %s, %s" % (v(b + q), v(b + 2 * q), v(b + 2 * q + 1)))
            e("s_lshl_b32 s58, s61, 2"); e("s_add_u32 s58, s58, %d" % (2 * i + u))
            e("s_mul_i32 s59, s58, 52429"); e("s_lshr_b32 s59, s59, 18")
            e("s_mul_i32 s57, s59, 5"); e("s_sub_u32 s58, s58, s57")
            e("s_mul_i32 s59, s59, s62"); e("s_add_u32 s59, s59, s60")
            e("s_mul_i32 s59, s59, 5"); e("s_add_u32 s59, s59, s58")
            e("s_lshl_b32 s59, s59, 10")
            e("s_add_u32 s57, s59, s63")
            e("buffer_store_dwordx4 %s, v5, %s, s57 offen%s" % (v(b, 4), s(S_WS, 4), WT))
    e("s_branch pr_f_done")
    e.label("pr_f_w1")
    for i in range(2):
        for u in range(2):
            b = ACC + 16 * i + 8 * u
            sum8(T + 2 * i + u, b)
            for q in range(4):
                e("v_cvt_pk_bf16_f32 %s, %s, %s" % (v(b + q), v(b + 2 * q), v(b + 2 * q + 1)))
            e("s_lshl_b32 s57, s61, 2"); e("s_add_u32 s57, s57, %d" % (2 * i + u))
            e("s_mul_i32 s58, s57, 9363"); e("s_lshr_b32 s58, s58, 16")
            e("s_mul_i32 s59, s58, 7"); e("s_sub_u32 s57, s57, s59")
            e("s_mul_i32 s58, s58, 20"); e("s_add_u32 s58, s58, s60"); e("s_mul_i32 s58, s58, 7"); e("s_add_u32 s57, s57, s58")
            e("s_lshl_b32 s57, s57, 10"); e("s_add_u32 s57, s57, 0x%x" % W1F)
            e("buffer_store_dwordx4 %s, v5, %s, s57 offen%s" % (v(b, 4), s(S_WS, 4), WT))
    select_g(T + 4, T, 4)
    e("v_lshlrev_b32 %s, 2, v1" % v(T + 5))
    e("s_mul_i32 s57, s60, 6912"); e("s_lshl_b32 s58, s61, 8"); e("s_add_u32 s57, s57, s58"); e("s_add_u32 s57, s57, 0x%x" % CS1)
    e("buffer_store_dword %s, %s, %s, s57 offen%s" % (v(T + 4), v(T + 5), s(S_WS, 4), WT))
    e.label("pr_f_done")
    e("s_branch pr_b2")

    e.label("pr_sync")
    e("v_readfirstlane_b32 s60, v166")
    e("v_readfirstlane_b32 s61, v167")
    e("s_lshl_b32 s57, s42, 7"); e("s_add_u32 s57, s57, 0x%x" % GOB)
    e("v_mov_b32 v23, 0")
    e("v_and_b32 v20, 31, v1"); e("v_lshlrev_b32 v20, 2, v20")
    e("s_mov_b32 s58, 0")
    e("s_cmp_lt_u32 s2, 8")
    e("s_cbranch_scc1 pr_scan")
    e.label("pr_gopoll")
    e("buffer_load_dword v22, v23, %s, s57 offen sc1" % s(S_WS, 4))
    e("s_waitcnt vmcnt(0)")
    e("v_readfirstlane_b32 s59, v22")
    e("s_add_u32 s58, s58, 1")
    e("s_sub_u32 s59, s59, s60")
    e("s_cmp_lg_u32 s59, 0")
    e("s_cbranch_scc1 pr_go")
    e("s_and_b32 s62, s58, 255")
    e("s_cmp_lg_u32 s62, 0")
    e("s_cbranch_scc1 pr_gopoll")
    e.label("pr_scan")
    e("buffer_load_dword v21, v20, %s, 0 offen sc0 sc1" % s(S_DBG, 4))
    e("s_waitcnt vmcnt(0)")
    e("v_and_b32 v22, 0x0f0f0f0f, v21")
    e("v_lshrrev_b32 v24, 4, v21"); e("v_and_b32 v24, 0x0f0f0f0f, v24")
    e("v_add_u32 v22, v22, v24")
    e("v_mul_lo_u32 v22, v22, s63") if False else None
    e("v_sad_u8 v22, v22, 0, 0")
    e("s_add_u32 s58, s58, 1")
    e("v_cmp_eq_u32 vcc, 8, v22")
    e("s_cmp_eq_u64 vcc, -1")
    e("s_cbranch_scc1 pr_scan_ok")
    e("s_cmp_ge_u32 s58, %d" % (SPIN_MAX * 4))
    e("s_cbranch_scc1 pr_scan_fail")
    e("s_cmp_lt_u32 s2, 8")
    e("s_cbranch_scc1 pr_scan")
    e("s_branch pr_gopoll")
    e.label("pr_scan_fail")
    e("s_mov_b32 %s, 1" % s(S_FAIL))
    e.label("pr_scan_ok")
    e("v_cmp_eq_u32 vcc, 0x11111111, v21")
    e("s_cmp_eq_u64 vcc, -1")
    e("s_cselect_b32 s59, 1, 2")
    e("s_cmp_lt_u32 s2, 8")
    e("s_cbranch_scc0 pr_go")
    e("s_add_u32 s62, s60, s59")
    e("v_mov_b32 v22, s62")
    e("s_mov_b64 exec, 1")
    e("buffer_store_dword v22, v23, %s, s57 offen" % s(S_WS, 4))
    e("s_mov_b64 exec, -1")
    e.label("pr_go")
    pstamp(7)
    if NOINV:
        e("s_cmp_eq_u32 s59, 1")
        if not FORCE_SLOW: e("s_cbranch_scc1 pr_noinv")
    e("buffer_inv sc1")
    if NOINV: e.label("pr_noinv")
    e("s_lshl_b32 s62, s42, 5"); e("s_lshr_b32 s63, s2, 3"); e("s_add_u32 s62, s62, s63")
    e("s_cmp_eq_u32 s59, 1")
    e("s_cselect_b32 s63, s62, s2")
    e("s_cselect_b32 s62, 1, 0")
    if FORCE_SLOW: e("s_mov_b32 s62, 0")
    e("s_cmp_lg_u32 %s, 0" % s(S_FAIL)); e("s_cselect_b32 s59, 2, 0"); e("s_or_b32 s62, s62, s59")
    e("v_mov_b32 v24, s63"); e("v_mov_b32 v25, s62"); e("v_mov_b32 v26, s61"); e("v_mov_b32 v27, s42")
    e("v_mov_b32 v28, %d" % MW)
    e("s_mov_b64 exec, 1")
    e("ds_write_b128 v28, v[24:27]")
    e("s_mov_b64 exec, -1")
    e("s_waitcnt vmcnt(0) lgkmcnt(0)")
    e.label("pr_b2")
    pstamp(6)
    e("s_barrier")
    e("v_mov_b32 v22, %d" % MW)
    e("ds_read_b128 v[24:27], v22")
    e("s_waitcnt lgkmcnt(0)")
    e("v_readfirstlane_b32 s45, v24")
    e("v_readfirstlane_b32 s46, v25")
    e("v_readfirstlane_b32 %s, v26" % s(S_LEAD))
    e("v_readfirstlane_b32 %s, v27" % s(S_LEAD + 1))
    e("s_nop 3")
    e("s_lshr_b32 %s, s45, 4" % s(G.S_TEAM))
    e("s_and_b32 %s, s45, 15" % s(G.S_MEM))
    e("s_and_b32 %s, s46, 1" % s(S_PURE))
    e("s_lshr_b32 %s, s46, 1" % s(S_FAIL))
    if PROF:
        pstamp(5)
        e("s_lshl_b32 s57, s2, 3"); e("s_add_u32 s57, s57, %s" % W); e("s_lshl_b32 s57, s57, 5")
        e("s_add_u32 s57, s57, 0x%x" % (PROFB + 0x80000))
        e("s_mov_b64 exec, 1")
        e("v_mov_b32 v30, 0")
        for i in range(8):
            e("v_mov_b32 v31, %s" % s(80 + 2 * i))
            e("buffer_store_dword v31, v30, %s, s57 offen offset:%d" % (s(S_WS, 4), 4 * i))
            e("s_nop 1")
        e("s_mov_b64 exec, -1")

def gen_phase2_arrive(e, G, pa_idx_sreg):
    e("s_cmp_eq_u32 %s, 0" % s(pa_idx_sreg))
    e("s_cbranch_scc1 p2_noarr")
    e("s_lshr_b32 s52, s2, 3"); e("s_lshl_b32 s52, s52, 2"); e("s_add_u32 s52, s52, 128")
    e("v_mov_b32 v20, s52"); e("v_mov_b32 v21, 1")
    e("s_mov_b64 exec, 1")
    e("buffer_atomic_add v21, v20, %s, 0 offen" % s(G.S_DBG, 4))
    e("s_mov_b64 exec, -1")
    e.label("p2_noarr")

def gen_phase2_wait(e, G, pa_idx_sreg):
    S_WS, S_FAIL, S_DBG, S_G1 = G.S_WS, G.S_FAIL, G.S_DBG, G.S_LEAD
    e("s_cmp_lg_u32 %s, 0" % s(pa_idx_sreg))
    e("s_cbranch_scc1 p2_done")
    e("s_lshl_b32 s52, %s, 7" % s(S_G1 + 1)); e("s_add_u32 s52, s52, 0x%x" % GOB)
    e("v_mov_b32 v23, 0")
    e("v_and_b32 v20, 31, v1"); e("v_lshlrev_b32 v20, 2, v20")
    e("s_mov_b32 s58, 0")
    e("s_cmp_lt_u32 s2, 8")
    e("s_cbranch_scc1 p2_scan")
    e.label("p2_poll")
    e("buffer_load_dword v22, v23, %s, s52 offen offset:4 sc1" % s(S_WS, 4))
    e("s_waitcnt vmcnt(0)")
    e("v_readfirstlane_b32 s53, v22")
    e("s_add_u32 s58, s58, 1")
    e("s_cmp_lg_u32 s53, %s" % s(S_G1))
    e("s_cbranch_scc1 p2_done")
    e("s_and_b32 s53, s58, 255")
    e("s_cmp_lg_u32 s53, 0")
    e("s_cbranch_scc1 p2_poll")
    e.label("p2_scan")
    e("buffer_load_dword v21, v20, %s, 0 offen offset:128 sc0 sc1" % s(S_DBG, 4))
    e("s_waitcnt vmcnt(0)")
    e("s_add_u32 s58, s58, 1")
    e("v_cmp_eq_u32 vcc, 8, v21")
    e("s_cmp_eq_u64 vcc, -1")
    e("s_cbranch_scc1 p2_scan_ok")
    e("s_cmp_ge_u32 s58, %d" % (SPIN_MAX * 4))
    e("s_cbranch_scc1 p2_fail")
    e("s_cmp_lt_u32 s2, 8")
    e("s_cbranch_scc1 p2_scan")
    e("s_branch p2_poll")
    e.label("p2_fail")
    e("s_mov_b32 %s, 1" % s(S_FAIL))
    e.label("p2_scan_ok")
    e("s_cmp_lt_u32 s2, 8")
    e("s_cbranch_scc0 p2_done")
    e("s_add_u32 s53, %s, 1" % s(S_G1))
    e("v_mov_b32 v22, s53")
    e("s_mov_b64 exec, 1")
    e("buffer_store_dword v22, v23, %s, s52 offen offset:4" % s(S_WS, 4))
    e("s_mov_b64 exec, -1")
    e.label("p2_done")
```

```python
import sys
from common import *
import common
import prol as P

PROF = False
import os
NS = int(os.environ.get('NS', 112))
RB = int(os.environ.get('RB', 5))
NOA = int(os.environ.get('NOA', 0)); NOB = int(os.environ.get('NOB', 0))
BTEST = int(os.environ.get('BTEST', 0))
XPH = int(os.environ.get('XPH', 112))
TOUCH = int(os.environ.get('TOUCH', 0)); TSC = os.environ.get('TSC', '')
BSC = ' sc1' if int(os.environ.get('BSC', 1)) else ''
ARING = 0
BRING = NS * 1024
MISC = BRING + RB * 8192
LDS_TOTAL = 163840
STG = BRING
KVF = BRING + 36864
XCH = BRING
MW = LDS_TOTAL - 256
CSL = MW - 1024
CS1L = CSL + 512
assert KVF + 10240 <= CSL
ACC_OFF = 184
NVG = 256

S_WS = 20; S_B1 = 24; S_B2 = 28; S_OUT = 32; S_X = 36
S_L = 16; S_PURE = 17; S_WAVE = 18; S_FAIL = 19
S_TEAM = 40; S_MEM = 41
S_DBG = 96; S_LEAD = 100
P2B = int(os.environ.get('P2B', 15))
SPIN_MAX = 0x20000

def stamp(e, i):
    if not PROF: return
    e("%s %s" % ("s_memtime" if os.environ.get("CLK") else "s_memrealtime", s(64 + 2 * i, 2)))
    e("s_waitcnt lgkmcnt(0)")
def stamp_flush(e, n, lay_sreg, raw=False):
    if not PROF: return
    e("s_waitcnt vmcnt(0) lgkmcnt(0)")
    e("s_lshl_b32 s59, %s, 8" % s(lay_sreg))
    e("s_lshl_b32 s60, %s, 4" % s(S_TEAM))
    e("s_add_u32 s59, s59, s60")
    e("s_add_u32 s59, s59, %s" % s(S_MEM))
    e("s_lshl_b32 s59, s59, 3")
    e("s_add_u32 s59, s59, %s" % s(S_WAVE))
    e("s_lshl_b32 s59, s59, 6")
    e("s_add_u32 s59, s59, %d" % PROFB)
    e("s_mov_b64 exec, 1")
    e("v_mov_b32 v30, 0")
    for i in range(n):
        e("v_mov_b32 v31, %s" % s(64 + (i if raw else 2 * i)))
        e("buffer_store_dword v31, v30, %s, s59 offen offset:%d" % (s(S_WS, 4), 4 * i))
        e("s_nop 1")
    e("s_mov_b64 exec, -1")
    e("s_waitcnt vmcnt(0)")

class Ph: pass
def phases():
    g1 = Ph(); g1.name = "g1"; g1.S = 20; g1.afr = [8] * 20; g1.tot = 160; g1.extra = ["ta", "tb", "tc"]
    g2 = Ph(); g2.name = "g2"; g2.S = 10; g2.afr = [10] * 10; g2.tot = 100; g2.extra = ["tx"]
    g3 = Ph(); g3.name = "g3"; g3.S = 20; g3.afr = [7] * 20; g3.tot = 140; g3.extra = []
    g4 = Ph(); g4.name = "g4"; g4.S = 27; g4.afr = [10] * 27; g4.tot = 272; g4.extra = ["tx"]
    ps = [g1, g2, g3, g4]
    f = 0
    for p in ps:
        p.F0 = f; f += p.tot
        assert p.tot % 4 == 0
    assert f % NS == 0, f
    return ps, f
PH, FTOT = phases()
def aslot(gf): return (gf % NS) * 1024

def poll_flags(e, vm, lbl, s_exp, s_flag, vtmp, vaddr):
    e("s_cmp_eq_u32 %s, 0" % s(s_exp))
    e("s_cbranch_scc1 %s_ok2" % lbl)
    e("s_mov_b32 s58, 0")
    e.label(lbl + "_poll")
    e("buffer_load_dword %s, %s, %s, %s offen sc1" % (v(vtmp), v(vaddr), s(S_WS, 4), s(s_flag)))
    e("s_waitcnt vmcnt(0)")
    e("v_cmp_le_u32 vcc, %s, %s" % (s(s_exp), v(vtmp)))
    e("s_add_u32 s58, s58, 1")
    e("s_cmp_eq_u64 vcc, -1")
    e("s_cbranch_scc1 %s_ok" % lbl)
    e("s_cmp_lg_u32 %s, 0" % s(S_FAIL))
    e("s_cbranch_scc1 %s_ok" % lbl)
    e("s_cmp_lt_u32 s58, %d" % SPIN_MAX)
    e("s_cbranch_scc1 %s_poll" % lbl)
    e("s_mov_b32 %s, 1" % s(S_FAIL))
    e.label(lbl + "_ok")
    e("s_cmp_lg_u32 %s, 0" % s(S_PURE))
    e("s_cbranch_scc1 %s_ok2" % lbl)
    e("buffer_inv sc1")
    e("s_waitcnt vmcnt(0)")
    e.label(lbl + "_ok2")
    vm.vm = []

def publish(e, vm, lbl, s_val, s_flagw, vz, vval):
    vm.wait_all(lg=False)
    e("v_mov_b32 %s, %s" % (v(vval), s(s_val)))
    e("s_mov_b64 exec, 1")
    e("s_cmp_lg_u32 %s, 0" % s(S_PURE))
    e("s_cbranch_scc1 %s_fast" % lbl)
    e("buffer_wbl2 sc1")
    e("s_waitcnt vmcnt(0)")
    e("buffer_store_dword %s, %s, %s, %s offen sc0 sc1" % (v(vval), v(vz), s(S_WS, 4), s(s_flagw)))
    e("s_branch %s_done" % lbl)
    e.label(lbl + "_fast")
    e("buffer_store_dword %s, %s, %s, %s offen" % (v(vval), v(vz), s(S_WS, 4), s(s_flagw)))
    e.label(lbl + "_done")
    e("s_mov_b64 exec, -1")
    vm.vm.append("flag")

def read_pure(e, vm, vtmp, vaddr_mw):
    vm.lds("ds_read_b32 %s, %s offset:4" % (v(vtmp), v(vaddr_mw)), "pure")
    vm.wait(lg=["pure"])
    e("v_readfirstlane_b32 %s, %s" % (s(S_PURE), v(vtmp)))

ROT = int(os.environ.get("ROT", 0))
NTA = int(os.environ.get("NTA", 0))
XPHV = [int(x) for x in os.environ.get("XPHV", "%d,%d,%d,%d" % (XPH, XPH, XPH, XPH)).split(",")]
def emit_rots(e, r1, r2, r4, t0, t1):
    if not ROT:
        for r in (r1, r2, r4): e("s_mov_b32 %s, 0" % s(r))
        return
    e("s_and_b32 %s, %s, 1" % (s(t0), s(S_TEAM)))
    if ROT & 1:
        e("s_lshr_b32 %s, %s, 2" % (s(r1), s(S_MEM))); e("s_add_u32 %s, %s, %s" % (s(r1), s(r1), s(S_MEM)))
    else:
        e("s_mov_b32 %s, 0" % s(r1))
    e("s_mul_i32 %s, %s, 10" % (s(t1), s(t0))); e("s_add_u32 %s, %s, %s" % (s(r1), s(r1), s(t1)))
    e("s_cmp_ge_u32 %s, 20" % s(r1)); e("s_cselect_b32 %s, 20, 0" % s(t1)); e("s_sub_u32 %s, %s, %s" % (s(r1), s(r1), s(t1)))
    e("s_lshl_b32 %s, %s, 1" % (s(t0), s(t0))); e("s_lshr_b32 %s, %s, 3" % (s(t1), s(S_MEM))); e("s_add_u32 %s, %s, %s" % (s(t0), s(t0), s(t1)))
    e("s_mul_i32 %s, %s, 5" % (s(r2), s(t0))); e("s_lshr_b32 %s, %s, 1" % (s(r2), s(r2)))
    e("s_mul_i32 %s, %s, 27" % (s(r4), s(t0))); e("s_lshr_b32 %s, %s, 2" % (s(r4), s(r4)))
    if ROT & 1:
        e("s_and_b32 %s, %s, 7" % (s(t1), s(S_MEM)))
        e("s_add_u32 %s, %s, %s" % (s(r2), s(r2), s(t1)))
        e("s_mul_i32 %s, %s, 3" % (s(t1), s(t1))); e("s_add_u32 %s, %s, %s" % (s(r4), s(r4), s(t1)))
    e("s_cmp_ge_u32 %s, 10" % s(r2)); e("s_cselect_b32 %s, 10, 0" % s(t1)); e("s_sub_u32 %s, %s, %s" % (s(r2), s(r2), s(t1)))
    e("s_cmp_ge_u32 %s, 27" % s(r4)); e("s_cselect_b32 %s, 27, 0" % s(t1)); e("s_sub_u32 %s, %s, %s" % (s(r4), s(r4), s(t1)))

def gen_pa(e, nphases):
    vm = VM(e)
    e.label("pa_start")
    e("s_and_b32 s42, %s, 1" % s(S_WAVE))
    e("s_mul_i32 s44, %s, 163840" % s(S_MEM)); e("s_add_u32 s44, s44, %d" % WQF)
    e("s_and_b32 s43, %s, 7" % s(S_MEM))
    e("s_mul_i32 s45, s43, %d" % (100 * 1024)); e("s_add_u32 s45, s45, %d" % WOF)
    e("s_mul_i32 s46, %s, %d" % (s(S_MEM), 140 * 1024)); e("s_add_u32 s46, s46, %d" % W1F)
    e("s_mul_i32 s47, s43, %d" % (270 * 1024)); e("s_add_u32 s47, s47, %d" % W2F)
    if int(os.environ.get("ATEST", 0)) == 1:
        e("s_mov_b32 s44, %d" % WQF); e("s_mov_b32 s45, %d" % WOF); e("s_mov_b32 s46, %d" % W1F); e("s_mov_b32 s47, %d" % W2F)
    e("s_lshl_b32 s48, s42, 12")
    for r in (44, 45, 46, 47): e("s_add_u32 %s, %s, s48" % (s(r), s(r)))
    base = [44, 45, 46, 47]
    wreg = [54, 55, 56, 57]
    RTOT = [p.S * p.afr[0] for p in PH]
    emit_rots(e, 59, 60, 61, 49, 50)
    for q, rr in enumerate((59, 60, 59, 61)):
        e("s_mul_i32 s49, %s, %d" % (s(rr), PH[q].afr[0]))
        e("s_lshl_b32 s50, s49, 10"); e("s_add_u32 %s, %s, s50" % (s(base[q]), s(base[q])))
        e("s_lshl_b32 s50, s42, 2"); e("s_add_u32 s49, s49, s50")
        e("s_sub_u32 %s, %d, s49" % (s(wreg[q]), RTOT[q]))
    nlay = 2
    total_chunks = (FTOT // 4) * nlay
    lastph = nphases
    lim = 0
    for q in range(lastph):
        p = PH[q % 4]; lim = (q // 4) * FTOT + p.F0 + p.tot
    total_chunks = lim // 4
    st = {"nc": 0}
    def addr(dst, tmp, q, pos, sub):
        e("s_add_u32 %s, %s, %d" % (s(dst), s(base[q]), (pos * 1024 - sub) & 0xffffffff))
        e("s_sub_u32 %s, %s, %d" % (s(tmp), s(dst), RTOT[q] * 1024))
        e("s_cmp_gt_i32 %s, %d" % (s(wreg[q]), pos))
        e("s_cselect_b32 %s, %s, %s" % (s(dst), s(dst), s(tmp)))
    def issue_upto(gf_limit):
        while st["nc"] < total_chunks and 4 * (st["nc"] + 2) <= gf_limit:
            c = st["nc"]
            gf = 4 * c
            def where(gfx):
                if gfx >= total_chunks * 4: return None
                rr = gfx % FTOT
                for i, p in enumerate(PH):
                    if p.F0 <= rr < p.F0 + p.tot: return i, rr - p.F0
            w0 = where(gf); w1 = where(gf + 4)
            same = w1 is not None and w0[0] == w1[0] and w1[1] == w0[1] + 4
            for h, dst in ((0, 49), (1, 52)):
                if same:
                    addr(dst, 50, w0[0], w0[1] + 2 * h, 2048 * h)
                else:
                    addr(dst, 50, w0[0], w0[1] + 2 * h, 2048 * h)
                    if w1 is not None: addr(51, 50, w1[0], w1[1] - 4 + 2 * h, 2048 * h)
                    else: e("s_sub_u32 s51, %s, 4096" % s(dst))
                    e("s_cmp_eq_u32 s42, 0")
                    e("s_cselect_b32 %s, %s, s51" % (s(dst), s(dst)))
            s0 = aslot(gf); s1 = aslot(gf + 4)
            if s1 == s0 + 4096:
                e("s_add_u32 m0, s48, %d" % (ARING + s0))
            else:
                e("s_cmp_eq_u32 s42, 0")
                e("s_mov_b32 s50, %d" % (ARING + s0)); e("s_mov_b32 s51, %d" % (ARING + s1))
                e("s_cselect_b32 m0, s50, s51")
            e("s_nop 0")
            for i in range(4):
                if NOA: continue
                ntf = " nt" if (NTA >> w0[0]) & 1 else ""
                vm.vmem("buffer_load_dwordx4 v5, %s, %s offen offset:%d%s lds" % (s(S_WS, 4), s(49 if i < 2 else 52), i * 1024, ntf), ("A", c // 2))
            st["nc"] += 2
    def need(gf_hi):
        cmax = (gf_hi - 1) // 4
        vm.wait(vm=[("A", k) for k in range(max(0, cmax // 2 - 40), cmax // 2 + 1)])
    PAI = PROF and int(os.environ.get("PAI", 0))
    def tick(acc):
        if not PAI: return
        e("s_memtime s[94:95]"); e("s_waitcnt lgkmcnt(0)")
        if acc is not None:
            e("s_sub_u32 s93, s94, s92"); e("s_add_u32 %s, %s, s93" % (s(acc), s(acc)))
        e("s_mov_b32 s92, s94")
    if PAI:
        for i in range(64, 92): e("s_mov_b32 %s, 0" % s(i))
    issue_upto(NS)
    consumed = 0
    for q in range(nphases):
        lay = q // 4; p = PH[q % 4]; F0 = lay * FTOT + p.F0
        off = 0
        AC = 64 + 3 * q
        for b in range(p.S):
            tick(AC + 2 if b > 0 else None)
            need(F0 + off + p.afr[b])
            if q == 0 and b == P2B: P.gen_phase2_wait(e, sys.modules[__name__], 42)
            tick(AC if b > 0 else None)
            e("s_barrier")
            tick(AC + 1 if b > 0 else None)
            if q == 0 and b == 1: P.gen_phase2_arrive(e, sys.modules[__name__], 42)
            if b >= 2: consumed = F0 + sum(p.afr[:b - 1])
            elif b == 0: consumed = F0
            lim_ = min(consumed + NS, (F0 + p.tot + XPHV[q % 4] + 7) // 8 * 8)
            if q == 0 and b < P2B: lim_ = min(lim_, p.tot)
            issue_upto(lim_)
            off += p.afr[b]
        e("s_barrier")
        consumed = F0 + p.tot
        issue_upto(consumed + NS)
        for x in p.extra: e("s_barrier")
    vm.wait_all(lg=False)
    if PAI:
        e("s_lshl_b32 s59, %s, 4" % s(S_TEAM)); e("s_add_u32 s59, s59, %s" % s(S_MEM)); e("s_lshl_b32 s59, s59, 1"); e("s_add_u32 s59, s59, s42")
        e("s_lshl_b32 s59, s59, 7"); e("s_add_u32 s59, s59, %d" % (PROFB + 0xA0000))
        e("s_mov_b64 exec, 1"); e("v_mov_b32 v30, 0")
        for i in range(24):
            e("v_mov_b32 v31, %s" % s(64 + i))
            e("buffer_store_dword v31, v30, %s, s59 offen offset:%d" % (s(S_WS, 4), 4 * i)); e("s_nop 1")
        e("s_waitcnt vmcnt(0)")
    e("s_endpgm")

FORCE_SLOW = False

def gen_pb(e, nphases):
    vm = VM(e)
    e.label("pb_start")
    e("s_and_b32 s42, %s, 1" % s(S_WAVE))
    e("s_lshl_b32 s43, %s, 8" % s(S_TEAM)); e("s_add_u32 s43, s43, %d" % FLG)
    e("v_lshlrev_b32 v9, 2, v1")
    for u in range(4):
        e("v_add_u32 %s, %d, v5" % (v(10 + u), u * (XP - 1024)))
    e("v_mov_b32 v22, %d" % MW)
    emit_rots(e, 54, 55, 56, 49, 50)
    e("s_mov_b32 %s, 0" % s(S_L))
    e.label("pb_layer")
    nlay_ph = min(nphases, 4)
    for q in range(nlay_ph):
        p = PH[q]
        lbl = "pb_%s" % p.name
        if nphases < 8 and q >= nphases - 4 and nphases > 4:
            pass
        if nphases > 4 and q >= nphases - 4 and nphases < 8:
            e("s_cmp_eq_u32 %s, 1" % s(S_L)); e("s_cbranch_scc1 pb_end")
        e("s_lshl_b32 s45, %s, 2" % s(S_L))
        if q > 0: e("s_add_u32 s45, s45, %d" % q)
        if p.name == "g1":
            e("s_mul_i32 s44, %s, %d" % (s(S_L), 2 * XSTEP)); e("s_add_u32 s44, s44, %d" % XB[0])
            e("s_mul_i32 s46, %s, %d" % (s(S_TEAM), 8 * XP))
            e("s_mul_i32 s47, s42, %d" % (4 * XP))
        elif p.name == "g3":
            e("s_mul_i32 s44, %s, %d" % (s(S_L), 2 * XSTEP)); e("s_add_u32 s44, s44, %d" % XB[1])
            e("s_mul_i32 s46, %s, %d" % (s(S_TEAM), 8 * XP))
            e("s_mul_i32 s47, s42, %d" % (4 * XP))
        else:
            pitch = XP if p.name == "g2" else HP
            if p.name == "g2":
                e("s_mul_i32 s44, %s, %d" % (s(S_L), OB[1] - OB[0])); e("s_add_u32 s44, s44, %d" % OB[0])
            else:
                e("s_mul_i32 s44, %s, %d" % (s(S_L), HB[1] - HB[0])); e("s_add_u32 s44, s44, %d" % HB[0])
            e("s_lshl_b32 s46, %s, 3" % s(S_TEAM))
            e("s_lshr_b32 s47, %s, 3" % s(S_MEM)); e("s_lshl_b32 s47, s47, 2"); e("s_add_u32 s46, s46, s47")
            e("s_lshl_b32 s47, s42, 1"); e("s_add_u32 s46, s46, s47")
            e("s_mul_i32 s46, s46, %d" % pitch)
            e("s_mov_b32 s47, 0")
        e("s_add_u32 s44, s44, s46"); e("s_add_u32 s44, s44, s47")
        if BTEST == 1:
            e("s_and_b32 s44, s44, 0x3fffff")
        if BTEST == 2:
            e("s_and_b32 s44, s44, 0x3fffff")
            e("s_mul_i32 s46, %s, %d" % (s(S_MEM), 0x31000)); e("s_add_u32 s44, s44, s46")
        if BTEST == 3:
            e("s_mul_i32 s46, %s, %d" % (s(S_MEM), 0x100000)); e("s_add_u32 s44, s44, s46")
        e("s_lshl_b32 s48, s42, 12")
        rreg = (54, 55, 54, 56)[q]; stride = 1024 if p.name in ("g1", "g3") else 2048
        e("s_mul_i32 s52, %s, %d" % (s(rreg), stride)); e("s_add_u32 s44, s44, s52")
        e("s_sub_u32 s53, %d, %s" % (p.S, s(rreg)))
        if not int(os.environ.get("PBI", 0)) and not int(os.environ.get("PBALL", 0)): stamp(e, 2 * q)
        poll_flags(e, vm, lbl, 45, 43, 20, 9)
        if not int(os.environ.get("PBI", 0)) and not int(os.environ.get("PBALL", 0)): stamp(e, 2 * q + 1)
        def issue_stage(st):
            if st >= p.S or NOB: return
            slot = BRING + (st % RB) * 8192
            e("s_add_u32 s49, s44, %d" % (st * stride))
            e("s_sub_u32 s52, s49, %d" % (p.S * stride))
            e("s_cmp_gt_u32 s53, %d" % st)
            e("s_cselect_b32 s49, s49, s52")
            if p.name in ("g1", "g3"):
                e("s_add_u32 m0, s48, %d" % slot)
                e("s_nop 0")
                for u in range(4):
                    vm.vmem("buffer_load_dwordx4 %s, %s, s49 offen offset:%d%s lds" % (v(10 + u), s(S_WS, 4), u * 1024, BSC), ("B", st))
            else:
                pitch = XP if p.name == "g2" else HP
                for w in range(2):
                    if w == 1: e("s_add_u32 s49, s49, %d" % pitch)
                    e("s_add_u32 m0, s48, %d" % (slot + w * 2048))
                    e("s_nop 0")
                    for kk in range(2):
                        vm.vmem("buffer_load_dwordx4 v5, %s, s49 offen offset:%d%s lds" % (s(S_WS, 4), kk * 1024, BSC), ("B", st))
        for st in range(RB): issue_stage(st)
        PHSEL = int(os.environ.get('PHSEL', 1))
        marks = [0, 1, 2, 4, 6, 9, p.S - 1]
        PBI = PROF and int(os.environ.get("PBI", 0))
        PBALL = PROF and int(os.environ.get("PBALL", 0))
        if PBALL:
            PBI = 0; marks = []
            if q == PHSEL:
                e("s_memtime s[94:95]"); e("s_waitcnt lgkmcnt(0)"); e("s_mov_b32 s92, s94")
        def tick(acc):
            if not PBI: return
            e("s_memtime s[94:95]"); e("s_waitcnt lgkmcnt(0)")
            if acc is not None:
                e("s_sub_u32 s93, s94, s92"); e("s_add_u32 %s, %s, s93" % (s(acc), s(acc)))
            e("s_mov_b32 s92, s94")
        AC = 64 + 3 * q
        if PBI:
            for i in range(3): e("s_mov_b32 %s, 0" % s(AC + i))
        for b in range(p.S):
            tick(AC + 2 if b > 0 else None)
            vm.wait(vm=[("B", b)])
            tick(AC if b > 0 else None)
            if q == PHSEL and b in marks and not PBI: stamp(e, 8 + marks.index(b))
            e("s_barrier")
            tick(AC + 1 if b > 0 else None)
            if PBALL and q == PHSEL:
                e("s_memtime s[94:95]"); e("s_waitcnt lgkmcnt(0)"); e("s_mov_b32 %s, s94" % s(64 + b))
            if q == PHSEL and b == 0 and not PBI and not PBALL: stamp(e, 15)
            if b >= 2: issue_stage(b + RB - 2)
        e("s_barrier")
        if PBALL and q == PHSEL:
            e("s_memtime s[94:95]"); e("s_waitcnt lgkmcnt(0)"); e("s_mov_b32 s93, s94")
            e("s_lshl_b32 s59, %s, 4" % s(S_TEAM)); e("s_add_u32 s59, s59, %s" % s(S_MEM)); e("s_lshl_b32 s59, s59, 1"); e("s_add_u32 s59, s59, s42")
            e("s_lshl_b32 s59, s59, 1"); e("s_add_u32 s59, s59, %s" % s(S_L))
            e("s_lshl_b32 s59, s59, 7"); e("s_add_u32 s59, s59, %d" % (PROFB + 0xA0000))
            e("s_mov_b64 exec, 1"); e("v_mov_b32 v30, 0")
            for i in range(30):
                e("v_mov_b32 v31, %s" % s(64 + i))
                e("buffer_store_dword v31, v30, %s, s59 offen offset:%d" % (s(S_WS, 4), 4 * i)); e("s_nop 1")
            e("s_mov_b64 exec, -1")
        if p.name == "g1":
            if TOUCH == 2:
                e("s_cmp_lg_u32 %s, 0" % s(S_L))
                e("s_cbranch_scc1 pb_notouch")
                e("s_lshl_b32 s46, %s, 3" % s(S_TEAM)); e("s_lshl_b32 s47, s42, 2"); e("s_add_u32 s46, s46, s47")
                e("s_mul_i32 s48, s46, %d" % XP); e("s_mul_i32 s49, %s, 1280" % s(S_MEM)); e("s_add_u32 s48, s48, s49")
                e("s_add_u32 s48, s48, %d" % OB[0])
                e("v_and_b32 v24, 31, v1"); e("v_lshlrev_b32 v24, 6, v24")
                e("v_lshrrev_b32 v25, 5, v1"); e("v_mul_u32_u24 v25, %d, v25" % XP)
                e("v_add_u32 v24, v24, v25")
                e("buffer_load_dword v39, v24, %s, s48 offen" % s(S_WS, 4))
                e("s_add_u32 s48, s48, %d" % (2 * XP))
                e("buffer_load_dword v39, v24, %s, s48 offen" % s(S_WS, 4))
                e("s_mul_i32 s48, s46, %d" % HP); e("s_mul_i32 s49, %s, 3584" % s(S_MEM)); e("s_add_u32 s48, s48, s49")
                e("s_add_u32 s48, s48, %d" % HB[0])
                e("v_lshlrev_b32 v24, 6, v1")
                for i in range(4):
                    e("buffer_load_dword v39, v24, %s, s48 offen" % s(S_WS, 4))
                    if i < 3: e("s_add_u32 s48, s48, %d" % HP)
                e.label("pb_notouch")
            e("s_barrier")
            e("s_barrier")
            pb_kv(e, vm)
            e("s_barrier")
        else:
            for x in p.extra: e("s_barrier")
    if nphases > 4:
        stamp_flush(e, 16, S_L, raw=bool(int(os.environ.get("PBI", 0))))
        e("s_add_u32 %s, %s, 1" % (s(S_L), s(S_L)))
        e("s_cmp_lt_u32 %s, 2" % s(S_L))
        e("s_cbranch_scc1 pb_layer")
    else:
        stamp_flush(e, 16, S_L)
    e.label("pb_end")
    if nphases > 4 and nphases < 8: stamp_flush(e, 16, S_L)
    vm.wait_all(lg=False)
    e("s_endpgm")

def pb_kv(e, vm):
    e("s_lshl_b32 s49, %s, 4" % s(S_L))
    e("s_add_u32 s49, s49, %s" % s(S_MEM))
    e("s_lshl_b32 s49, s49, 8")
    e("s_add_u32 s49, s49, %d" % CNT)
    e("v_mov_b32 v23, 0")
    e("s_mov_b64 exec, 1")
    e("s_cmp_lg_u32 s42, 0")
    e("s_cbranch_scc1 kv_noadd")
    e("v_mov_b32 v24, 1")
    e("buffer_atomic_add v24, v23, %s, s49 offen sc1" % s(S_WS, 4))
    e.label("kv_noadd")
    e("s_mov_b32 s58, 0")
    e.label("kv_poll")
    e("buffer_load_dword v24, v23, %s, s49 offen sc1" % s(S_WS, 4))
    e("s_waitcnt vmcnt(0)")
    e("v_readfirstlane_b32 s50, v24")
    e("s_add_u32 s58, s58, 1")
    e("s_cmp_ge_u32 s50, 16")
    e("s_cbranch_scc1 kv_ok")
    e("s_cmp_lg_u32 %s, 0" % s(S_FAIL))
    e("s_cbranch_scc1 kv_ok")
    e("s_cmp_lt_u32 s58, %d" % SPIN_MAX)
    e("s_cbranch_scc1 kv_poll")
    e("s_mov_b32 %s, 1" % s(S_FAIL))
    e.label("kv_ok")
    e("s_mov_b64 exec, -1")
    vm.vm = []
    stamp(e, 8) if False else None
    e("v_and_b32 v24, 31, v1")
    e("v_bfe_u32 v25, v24, 2, 1")
    e("v_and_b32 v26, 3, v24")
    e("v_lshrrev_b32 v27, 3, v24")
    e("v_lshlrev_b32 v27, 2, v27")
    e("v_add_u32 v26, v26, v27")
    e("s_lshl_b32 s50, s42, 4")
    e("v_add_u32 v26, s50, v26")
    e("s_lshl_b32 s50, %s, 1" % s(S_MEM))
    e("v_add_u32 v27, s50, v25")
    e("v_lshlrev_b32 v27, 5, v27")
    e("v_add_u32 v27, v27, v26")
    e("v_mul_u32_u24 v27, 192, v27")
    e("v_mov_b32 v28, 0x%x" % OOB)
    e("v_lshrrev_b32 v29, 5, v1")
    e("v_cmp_eq_u32 vcc, v25, v29")
    e("s_nop 1")
    e("v_cndmask_b32 v27, v28, v27, vcc")
    e("v_cmp_ge_u32 vcc, 20, v26")
    e("s_nop 1")
    e("v_cndmask_b32 v27, v28, v27, vcc")
    e("s_mul_i32 s50, %s, %d" % (s(S_L), KVB[1] - KVB[0]))
    e("s_add_u32 s50, s50, %d" % KVB[0])
    LD = 40
    for i in range(5):
        for hq in range(2):
            vm.vmem("buffer_load_dwordx4 %s, v27, %s, s50 offen offset:%d sc1" % (v(LD + 8 * i + 4 * hq, 4), s(S_WS, 4), i * 32 + hq * 16), ("kv", i))
    e("s_mul_i32 s51, s42, 5120")
    e("s_add_u32 s51, s51, %d" % KVF)
    e("v_add_u32 v28, s51, v5")
    for i in range(5):
        vm.wait(vm=[("kv", i)])
        for q in range(4):
            e("v_cvt_pk_bf16_f32 %s, %s, %s" % (v(80 + 4 * i + q), v(LD + 8 * i + 2 * q), v(LD + 8 * i + 2 * q + 1)))
        vm.lds("ds_write_b128 v28, %s offset:%d" % (v(80 + 4 * i, 4), i * 1024), "kvw")
    vm.wait_all(vm=False)

def c_gemm(e, vm, p, steps, gaps):
    def do_read(i, j):
        dst, va, off = steps[i]["reads"][j]
        vm.lds("ds_read_b128 %s, %s offset:%d" % (dst, v(va), off), (i, j))
    e("s_barrier")
    for j in range(len(steps[0]["reads"])): do_read(0, j)
    for i, stp in enumerate(steps):
        nxt = steps[i + 1] if i + 1 < len(steps) else None
        need_bar = nxt is not None and nxt["stage"] != stp["stage"]
        rj = 0
        for m, (txt, needs) in enumerate(stp["mf"]):
            vm.wait(lg=[(i, j) for j in needs])
            e(txt)
            if m == 0 and need_bar: e("s_barrier")
            if nxt is not None:
                k = gaps[m] if m < len(gaps) else 0
                for _ in range(k):
                    if rj < len(nxt["reads"]): do_read(i + 1, rj); rj += 1
        if nxt is not None:
            while rj < len(nxt["reads"]): do_read(i + 1, rj); rj += 1
    e("s_barrier")

BTWIN = {7: 180, 8: 181, 9: 182, 20: 183}
def b_read(dst, reg, off):
    return (dst, reg, off) if off < 65536 else (dst, BTWIN[reg], off - 65536)

def a_read(gf, dst):
    off = ARING + aslot(gf)
    return (dst, 5 if off < 65536 else 6, off & 0xffff)

def emit_rstd2(e, ld, nsl, out, t, double, xsum, nmean=None, nmrs=None):
    e("v_add_f32 %s, %s, %s" % (v(t), v(ld), v(ld + 2)))
    for j in range(2, nsl): e("v_add_f32 %s, %s, %s" % (v(t), v(t), v(ld + 2 * j)))
    xsum(e, t, t + 1)
    e("v_mul_f32 %s, 0x%x, %s" % (v(t), f32(0.125), v(t)))
    e("v_add_f32 %s, %s, %s" % (v(t + 2), v(ld + 1), v(ld + 3)))
    for j in range(2, nsl): e("v_add_f32 %s, %s, %s" % (v(t + 2), v(t + 2), v(ld + 2 * j + 1)))
    e("v_mov_b32 %s, 0" % v(t + 3))
    for j in range(nsl):
        e("v_sub_f32 %s, %s, %s" % (v(ld + 2 * j), v(ld + 2 * j), v(t)))
        e("v_fmac_f32 %s, %s, %s" % (v(t + 3), v(ld + 2 * j), v(ld + 2 * j)))
    e("v_fmamk_f32 %s, %s, 0x%x, %s" % (v(t + 2), v(t + 3), f32(80.0), v(t + 2)))
    xsum(e, t + 2, t + 1)
    e("v_mul_f32 %s, 0x%x, %s" % (v(t + 2), f32(1.0 / 640), v(t + 2)))
    e("v_add_f32 %s, 0x%x, %s" % (v(t + 3), f32(1e-5), v(t + 2)))
    e("v_rsq_f32 %s, %s" % (v(out), v(t + 3)))
    e("s_nop 0")
    if double:
        e("v_mul_f32 %s, %s, %s" % (v(t + 3), v(out), v(out)))
        e("v_mul_f32 %s, %s, %s" % (v(t + 3), v(t + 3), v(t + 2)))
        e("v_add_f32 %s, 0x%x, %s" % (v(t + 3), f32(1e-5), v(t + 3)))
        e("v_rsq_f32 %s, %s" % (v(t + 3), v(t + 3)))
        e("s_nop 0")
        e("v_mul_f32 %s, %s, %s" % (v(out), v(out), v(t + 3)))
    if nmean is not None: e("v_mul_f32 %s, -1.0, %s" % (v(nmean), v(t)))
    if nmrs is not None: e("v_mul_f32_e64 %s, -%s, %s" % (v(nmrs), v(t), v(out)))

def emit_softmax_pair(e, p, t, c, o, x):
    mx, mn = x, x + 1
    e("v_max3_f32 %s, %s, %s, %s" % (v(mx), v(p), v(p + 1), v(p + 2)))
    e("v_min3_f32 %s, %s, %s, %s" % (v(mn), v(p), v(p + 1), v(p + 2)))
    for i in range(3, 19, 2):
        e("v_max3_f32 %s, %s, %s, %s" % (v(mx), v(mx), v(p + i), v(p + i + 1)))
        e("v_min3_f32 %s, %s, %s, %s" % (v(mn), v(mn), v(p + i), v(p + i + 1)))
    e("v_max_f32 %s, %s, %s" % (v(mx), v(mx), v(p + 19)))
    e("v_min_f32 %s, %s, %s" % (v(mn), v(mn), v(p + 19)))
    e("v_mul_f32_e64 %s, -%s, %s" % (v(mx), v(c), v(mx)))
    e("v_mul_f32 %s, %s, %s" % (v(mn), v(c), v(mn)))
    for i in range(20):
        e("v_fma_f32 %s, %s, %s, %s" % (v(t + i), v(p + i), v(c), v(mx)))
        e("v_fma_f32 %s, %s, -%s, %s" % (v(p + i), v(p + i), v(c), v(mn)))
    for i in range(20):
        e("v_exp_f32 %s, %s" % (v(t + i), v(t + i)))
        e("v_exp_f32 %s, %s" % (v(p + i), v(p + i)))
    s0, s1 = x + 2, x + 4
    e("v_pk_add_f32 %s, %s, %s" % (v(s0, 2), v(t, 2), v(t + 2, 2)))
    e("v_pk_add_f32 %s, %s, %s" % (v(s1, 2), v(p, 2), v(p + 2, 2)))
    for i in range(4, 20, 2):
        e("v_pk_add_f32 %s, %s, %s" % (v(s0, 2), v(s0, 2), v(t + i, 2)))
        e("v_pk_add_f32 %s, %s, %s" % (v(s1, 2), v(s1, 2), v(p + i, 2)))
    e("v_add_f32 %s, %s, %s" % (v(s0), v(s0), v(s0 + 1)))
    e("v_add_f32 %s, %s, %s" % (v(s1), v(s1), v(s1 + 1)))
    e("v_rcp_f32 %s, %s" % (v(s0), v(s0)))
    e("v_rcp_f32 %s, %s" % (v(s1), v(s1)))
    e("s_nop 0")
    for i in range(0, 20, 2):
        e("v_pk_mul_f32 %s, %s, %s op_sel_hi:[1,0]" % (v(t + i, 2), v(t + i, 2), v(s0, 2)))
        e("v_pk_mul_f32 %s, %s, %s op_sel_hi:[1,0]" % (v(p + i, 2), v(p + i, 2), v(s1, 2)))
    for i in range(10):
        e("v_cvt_pk_bf16_f32 %s, %s, %s" % (v(o + i), v(t + 2 * i), v(t + 2 * i + 1)))
    for i in range(10):
        e("v_cvt_pk_bf16_f32 %s, %s, %s" % (v(o + 10 + i), v(p + 2 * i), v(p + 2 * i + 1)))

V_A0 = 5; V_A1 = 6
V_B1 = 7
V_B3 = 8
V_B40 = 9; V_B41 = 20
V_RES = 10
V_Z = 21
V_MW = 22
V_O16 = 23
V_TOK32 = 24
V_HH = 25
V_ST0 = 26
V_XW = 27; V_XR = 28
V_H16 = 29
RS = 36
ACC = 40

def c_g1(e, vm):
    p = PH[0]
    e("s_mul_i32 s46, %s, %d" % (s(S_L), 2 * (STB[1] - STB[0]))); e("s_add_u32 s46, s46, %d" % STB[0])
    e("s_lshl_b32 s47, %s, 13" % s(S_TEAM)); e("s_add_u32 s46, s46, s47")
    e("s_lshl_b32 s47, %s, 11" % s(S_WAVE)); e("s_add_u32 s46, s46, s47")
    e("v_lshlrev_b32 v30, 6, %s" % v(V_TOK32))
    e("v_lshlrev_b32 v31, 5, %s" % v(V_HH))
    e("v_add_u32 v30, v30, v31")
    steps = []
    for ks in range(40):
        par = ks & 1; st = ks // 2
        AB = par * 20
        reads = [b_read(a(AB, 4), V_B1, (st % RB) * 8192 + (ks & 1) * 512)]
        for T in range(4): reads.append(a_read(p.F0 + ks * 4 + T, a(AB + 4 + 4 * T, 4)))
        mf = []
        for T in range(4):
            cc = "0" if ks == 0 else v(ACC + 16 * T, 16)
            mf.append(("v_mfma_f32_32x32x16_bf16 %s, %s, %s, %s" % (v(ACC + 16 * T, 16), a(AB + 4 + 4 * T, 4), a(AB, 4), cc), [0, 1 + T]))
        steps.append(dict(stage=st, reads=reads, mf=mf))
    class Hook: pass
    orig = vm.lds
    c_gemm_with_hook(e, vm, p, steps, [2, 2, 1, 0],
        lambda: [vm.vmem("buffer_load_dwordx4 %s, v30, %s, s46 offen offset:%d sc1" % (v(104 + 4 * i, 4), s(S_WS, 4), 16 * i), "st") for i in range(2)])
    stamp(e, 1)
    CSR = 120
    e("v_lshlrev_b32 v30, 4, %s" % v(V_HH)); e("v_add_u32 v30, %d, v30" % CSL)
    for T in (1, 2, 3, 0):
        for j in range(4):
            if T == 3 and j == 3: continue
            vm.lds("ds_read_b128 %s, v30 offset:%d" % (v(CSR + 16 * T + 4 * j, 4), (T * 32 + 8 * j) * 4), ("cs", T))
    vm.wait(vm=["st"])
    emit_rstd2(e, 104, 4, RS, 112, False, xlane_sum_32, nmean=38)
    for T in (1, 2, 3, 0):
        vm.wait(lg=[("cs", T)])
        for i in range(0, 16 if T < 3 else 12, 2):
            e("v_pk_fma_f32 %s, %s, v[38:39], %s op_sel_hi:[1,0,1]" % (v(ACC + 16 * T + i, 2), v(CSR + 16 * T + i, 2), v(ACC + 16 * T + i, 2)))
    e("v_mul_f32 %s, 0x%x, %s" % (v(RS + 1), LOG2E, v(RS)))
    e.nop(4)
    TM = 104; PK = 124; X = 156
    emit_softmax_pair(e, ACC + 20, TM, RS + 1, PK, X)
    for i in range(0, 20, 2):
        e("v_pk_mul_f32 %s, %s, %s op_sel_hi:[1,0]" % (v(ACC + 40 + i, 2), v(ACC + 40 + i, 2), v(RS, 2)))
    for i in range(10):
        e("v_cvt_pk_bf16_f32 %s, %s, %s" % (v(PK + 20 + i), v(ACC + 40 + 2 * i), v(ACC + 40 + 2 * i + 1)))
    e("v_mov_b32 %s, 0x3f80" % v(PK + 30))
    e("v_mov_b32 %s, 0" % v(PK + 31))
    e("s_lshl_b32 s46, %s, 5" % s(S_WAVE))
    e("v_lshlrev_b32 v30, 7, %s" % v(V_HH))
    e("v_add_u32 v30, v30, %s" % v(V_TOK32))
    e("v_add_u32 v30, s46, v30")
    e("v_mul_u32_u24 v30, 144, v30")
    e("v_add_u32 v30, %d, v30" % STG)
    for i in range(8):
        vm.lds("ds_write_b128 v30, %s offset:%d" % (v(PK + 4 * i, 4), 16 * i), "w")
    vm.wait(lg=["w"])
    e("s_barrier")
    stamp(e, 2)
    e("s_lshr_b32 s46, %s, 1" % s(S_WAVE))
    e("s_lshl_b32 s46, s46, 7")
    e("v_lshlrev_b32 v30, 3, v4")
    e("v_lshrrev_b32 v31, 2, v3")
    e("v_add_u32 v30, v30, v31")
    e("v_add_u32 v30, s46, v30")
    e("v_mul_u32_u24 v30, 144, v30")
    e("v_and_b32 v31, 3, v3")
    e("v_lshlrev_b32 v31, 3, v31")
    e("v_add_u32 v30, v30, v31")
    e("v_add_u32 v30, %d, v30" % STG)
    e("s_and_b32 s47, %s, 1" % s(S_WAVE))
    e("s_lshl_b32 s48, s47, 5")
    e("v_add_u32 v31, s48, v30")
    FA = 104; FB = 120; KD = 168
    for ks in range(4):
        for pp in range(2):
            vm.lds("ds_read_b64_tr_b16 %s, v31 offset:%d" % (v(FA + 4 * ks + 2 * pp, 2), ks * 32 * 144 + pp * 4 * 144 + 80), "tr%d" % ks)
        for ft in range(3):
            for pp in range(2):
                vm.lds("ds_read_b64_tr_b16 %s, v30 offset:%d" % (v(FB + 12 * ks + 4 * ft + 2 * pp, 2), ks * 32 * 144 + pp * 4 * 144 + ft * 32), "tr%d" % ks)
        if ks >= 1:
            k0 = ks - 1
            vm.wait(lg=["tr%d" % k0])
            for ft in range(3):
                e("v_mfma_f32_16x16x32_bf16 %s, %s, %s, %s" % (v(KD + 4 * ft, 4), v(FA + 4 * k0, 4), v(FB + 12 * k0 + 4 * ft, 4), "0" if k0 == 0 else v(KD + 4 * ft, 4)))
    vm.wait(lg=["tr3"])
    for ft in range(3):
        e("v_mfma_f32_16x16x32_bf16 %s, %s, %s, %s" % (v(KD + 4 * ft, 4), v(FA + 12, 4), v(FB + 36 + 4 * ft, 4), v(KD + 4 * ft, 4)))
    e("s_lshl_b32 s46, %s, 1" % s(S_MEM))
    e("s_lshr_b32 s48, %s, 1" % s(S_WAVE))
    e("s_add_u32 s46, s46, s48")
    e("s_mul_i32 s46, s46, 6144")
    e("s_mul_i32 s48, s47, %d" % (16 * 192))
    e("s_add_u32 s46, s46, s48")
    e("s_mul_i32 s48, %s, %d" % (s(S_L), KVB[1] - KVB[0]))
    e("s_add_u32 s46, s46, s48")
    e("s_add_u32 s46, s46, %d" % KVB[0])
    e("v_mul_u32_u24 v30, %d, v4" % (4 * 192))
    e("v_lshlrev_b32 v31, 2, v3")
    e("v_add_u32 v30, v30, v31")
    e.nop(4)
    e("s_cmp_eq_u32 s47, 1")
    e("s_cbranch_scc1 g1_at1")
    for ft in range(3):
        if ft == 2:
            e("s_mov_b32 exec_lo, 0x00ff00ff"); e("s_mov_b32 exec_hi, 0x00ff00ff")
        for r in range(4):
            e("buffer_atomic_add_f32 %s, v30, %s, s46 offen offset:%d" % (v(KD + 4 * ft + r), s(S_WS, 4), r * 192 + ft * 64))
    e("s_branch g1_atdone")
    e.label("g1_at1")
    for ft in range(3):
        for r in range(4):
            lo = 0xffffffff if r == 0 else 0xffff
            if ft == 2: lo &= 0x00ff00ff
            e("s_mov_b32 exec_lo, 0x%x" % lo); e("s_mov_b32 exec_hi, 0")
            e("buffer_atomic_add_f32 %s, v30, %s, s46 offen offset:%d" % (v(KD + 4 * ft + r), s(S_WS, 4), r * 192 + ft * 64))
    e.label("g1_atdone")
    e("s_mov_b64 exec, -1")
    stamp(e, 3)
    PQ = 124
    emit_softmax_pair(e, ACC, TM, RS + 1, PQ, X)
    stamp(e, 4)
    e("s_waitcnt vmcnt(0)"); vm.vm = []
    e("s_barrier")
    stamp(e, 5)
    e("s_cmp_lg_u32 %s, 0" % s(S_L))
    e("s_cbranch_scc1 g1_nocs1")
    e("s_mul_i32 s46, %s, 112" % s(S_WAVE))
    e("v_lshlrev_b32 v31, 2, %s" % v(V_TOK32)); e("v_add_u32 v31, s46, v31")
    e("v_mul_u32_u24 v32, 6912, %s" % v(V_HH)); e("v_add_u32 v32, v32, v31")
    e("s_mul_i32 s46, %s, 448" % s(S_MEM)); e("s_add_u32 s46, s46, 0x%x" % CS1)
    for t in range(10):
        e("buffer_load_dword %s, v32, %s, s46 offen" % (v(40 + t), s(S_WS, 4)))
        if t < 9: e("s_add_u32 s46, s46, 13824")
    e("v_add_u32 v31, %d, v31" % CS1L)
    e("s_waitcnt vmcnt(0)")
    for t in range(1, 10): e("v_add_f32 v40, v40, %s" % v(40 + t))
    xlane_sum_32(e, 40, 50)
    e("s_mov_b32 exec_hi, 0"); e("s_mov_b32 exec_lo, 0xfffffff")
    e("ds_write_b32 v31, v40")
    e("s_mov_b64 exec, -1")
    e("s_waitcnt lgkmcnt(0)")
    e.label("g1_nocs1")
    e("s_barrier")
    stamp(e, 6)
    e("v_add_u32 v30, %d, v5" % KVF)
    for To in range(2):
        for i in range(5):
            vm.lds("ds_read_b128 %s, v30 offset:%d" % (a(20 * To + 4 * i, 4), To * 5120 + i * 1024), ("kf", To, i))
    OD = 60
    for To in range(2):
        for i in range(5):
            vm.wait(lg=[("kf", To, i)])
            e("v_mfma_f32_32x32x16_bf16 %s, %s, %s, %s" % (v(OD + 16 * To, 16), a(20 * To + 4 * i, 4), v(PQ + 4 * i, 4), "0" if i == 0 else v(OD + 16 * To, 16)))
    e.nop(12)
    AF = 144
    e("v_add_f32 v30, 0x%x, %s" % (f32(1e-6), v(OD + 20)))
    e("v_rcp_f32 v32, v30")
    e("s_nop 0")
    for i in range(0, 20, 2):
        e("v_pk_mul_f32 %s, %s, v[32:33] op_sel_hi:[1,0]" % (v(OD + i, 2), v(OD + i, 2)))
    for i in range(10):
        e("v_cvt_pk_bf16_f32 %s, %s, %s" % (v(AF + i), v(OD + 2 * i), v(OD + 2 * i + 1)))
    e("v_bfe_u32 v30, v1, 4, 1")
    e("v_mul_u32_u24 v30, %d, v30" % XP)
    e("v_lshlrev_b32 v31, 4, v3")
    e("v_add_u32 v30, v30, v31")
    e("v_lshlrev_b32 v31, 9, %s" % v(V_HH))
    e("v_add_u32 v31, v31, v30")
    e("v_lshlrev_b32 v32, 3, %s" % v(V_HH))
    e("v_add_u32 v32, v32, v30")
    e("s_lshl_b32 s46, %s, 3" % s(S_TEAM))
    e("s_lshl_b32 s47, %s, 1" % s(S_WAVE))
    e("s_add_u32 s46, s46, s47")
    e("s_mul_i32 s46, s46, %d" % XP)
    e("s_mul_i32 s47, %s, 1280" % s(S_MEM))
    e("s_add_u32 s46, s46, s47")
    e("s_mul_i32 s47, %s, %d" % (s(S_L), OB[1] - OB[0]))
    e("s_add_u32 s46, s46, s47")
    e("s_add_u32 s46, s46, %d" % OB[0])
    vm.vmem("buffer_store_dwordx4 %s, v31, %s, s46 offen" % (v(AF, 4), s(S_WS, 4)), "ost")
    vm.vmem("buffer_store_dwordx4 %s, v31, %s, s46 offen offset:256" % (v(AF + 4, 4), s(S_WS, 4)), "ost")
    vm.vmem("buffer_store_dwordx2 %s, v32, %s, s46 offen offset:1024" % (v(AF + 8, 2), s(S_WS, 4)), "ost")
    e("s_lshl_b32 s47, %s, 2" % s(S_L)); e("s_add_u32 s47, s47, 1")
    publish(e, vm, "g1_pub", 47, 61, V_Z, 30)
    stamp(e, 7)

def c_gemm_with_hook(e, vm, p, steps, gaps, hook):
    n0 = len(steps[0]["reads"])
    cnt = {"n": 0}
    orig = vm.lds
    def lds2(txt, tag=None):
        orig(txt, tag); cnt["n"] += 1
        if cnt["n"] == n0: hook()
    vm.lds = lds2
    c_gemm(e, vm, p, steps, gaps)
    vm.lds = orig

def c_gres(e, vm, q):
    p = PH[q]; nm = p.name; bias = nm == "g4"
    steps = []
    for st in range(p.S):
        par = st & 1
        AB = par * 28
        g0 = p.F0 + st * 10
        reads = [b_read(a(AB, 4), V_B40, (st % RB) * 8192)]
        def ar(T):
            o0 = ARING + aslot(g0 + T); o1 = ARING + aslot(g0 + 5 + T)
            if o1 == o0 + 5120:
                return (a(AB + 8 + 4 * T, 4), 34, o0) if o0 < 65536 else (a(AB + 8 + 4 * T, 4), 35, o0 - 65536)
            else:
                X = NS * 1024 - 5120
                assert o1 == o0 - X and o0 >= X
                return (a(AB + 8 + 4 * T, 4), 2, o0 - X)
        reads.append(ar(0))
        reads.append(b_read(a(AB + 4, 4), V_B41, (st % RB) * 8192))
        for T in range(1, 5): reads.append(ar(T))
        mf = []
        for T in range(5):
            for b in range(2):
                acc = ACC + 8 * T + 4 * b
                cc = "0" if st == 0 else v(acc, 4)
                needs = [0 if b == 0 else 2, 1 if T == 0 else 2 + T]
                mf.append(("v_mfma_f32_16x16x32_bf16 %s, %s, %s, %s" % (v(acc, 4), a(AB + 8 + 4 * T, 4), a(AB + 4 * b, 4), cc), needs))
        steps.append(dict(stage=st, reads=reads, mf=mf))
    BIAS = 120
    def hook():
        if bias:
            e("v_lshlrev_b32 v30, 3, v4")
            e("s_and_b32 s46, %s, 7" % s(S_MEM))
            e("s_mul_i32 s46, s46, 160")
            for T in range(5):
                vm.vmem("buffer_load_dwordx2 %s, v30, %s, s46 offen offset:%d" % (v(BIAS + 2 * T, 2), s(S_B2, 4), T * 32), "bias")
    c_gemm_with_hook(e, vm, p, steps, [1] * 7, hook)
    stamp(e, 9 if nm == "g2" else 13)
    e.nop(8)
    for T in range(5):
        vm.lds("ds_write_b128 %s, %s offset:%d" % (v(V_XW), v(ACC + 8 * T + 4, 4), T * 1024), "xw")
    vm.wait(lg=["xw"])
    e("s_barrier")
    RX = 80
    for T in range(5):
        vm.lds("ds_read_b128 %s, %s offset:%d" % (v(RX + 4 * T, 4), v(V_XR), T * 1024), ("xr", T))
    VAL = 100
    if bias: vm.wait(vm=["bias"])
    for T in range(5):
        vm.wait(lg=[("xr", T)])
        for h in range(2):
            i = 2 * T + h
            e("v_pk_add_f32 %s, %s, %s" % (v(VAL + 2 * i, 2), v(ACC + 8 * T + 2 * h, 2), v(RX + 4 * T + 2 * h, 2)))
            e("v_lshlrev_b32 v30, 16, %s" % v(V_RES + i))
            e("v_and_b32 v31, 0xffff0000, %s" % v(V_RES + i))
            e("v_pk_add_f32 %s, %s, v[30:31]" % (v(VAL + 2 * i, 2), v(VAL + 2 * i, 2)))
            if bias:
                e("v_lshlrev_b32 v38, 16, %s" % v(BIAS + i))
                e("v_and_b32 v39, 0xffff0000, %s" % v(BIAS + i))
                e("v_pk_add_f32 %s, %s, v[38:39]" % (v(VAL + 2 * i, 2), v(VAL + 2 * i, 2)))
    for i in range(10):
        e("v_cvt_pk_bf16_f32 %s, %s, %s" % (v(V_RES + i), v(VAL + 2 * i), v(VAL + 2 * i + 1)))
    SW = 80
    for i in range(8): e("v_mov_b32 %s, %s" % (v(SW + i), v(V_RES + i)))
    e("s_nop 1")
    for pr in range(2):
        for i in range(2):
            e("v_permlane16_swap_b32 %s, %s" % (v(SW + 4 * pr + i), v(SW + 4 * pr + 2 + i)))
    e("s_lshl_b32 s46, %s, 3" % s(S_TEAM))
    e("s_lshr_b32 s47, %s, 3" % s(S_MEM)); e("s_lshl_b32 s47, s47, 2"); e("s_add_u32 s46, s46, s47")
    e("s_add_u32 s46, s46, %s" % s(S_WAVE))
    e("s_and_b32 s47, %s, 7" % s(S_MEM))
    if nm == "g4":
        e("s_cmp_eq_u32 %s, 1" % s(S_L))
        e("s_cbranch_scc1 g4_final")
    e("s_mul_i32 s48, s46, %d" % XP)
    e("s_mul_i32 s49, s47, 2560")
    e("s_add_u32 s48, s48, s49")
    e("s_mul_i32 s49, %s, %d" % (s(S_L), 2 * XSTEP))
    e("s_add_u32 s48, s48, s49")
    e("s_add_u32 s48, s48, %d" % (XB[1] if nm == "g2" else XB[2]))
    e("s_nop 0")
    for pr in range(2):
        vm.vmem("buffer_store_dwordx4 %s, %s, %s, s48 offen offset:%d" % (v(SW + 4 * pr, 4), v(V_O16), s(S_WS, 4), pr * 1024), "xst")
    e("v_lshrrev_b32 v30, 1, v4"); e("v_lshlrev_b32 v30, 8, v30")
    e("v_lshlrev_b32 v31, 4, v3"); e("v_add_u32 v30, v30, v31")
    e("v_and_b32 v31, 1, v4"); e("v_lshlrev_b32 v31, 3, v31"); e("v_add_u32 v30, v30, v31")
    vm.vmem("buffer_store_dwordx2 %s, v30, %s, s48 offen offset:2048" % (v(V_RES + 8, 2), s(S_WS, 4)), "xst")
    e("s_lshl_b32 s48, s46, 10")
    e("s_lshl_b32 s49, s47, 3")
    e("s_add_u32 s48, s48, s49")
    e("s_mul_i32 s49, %s, %d" % (s(S_L), 2 * (STB[1] - STB[0])))
    e("s_add_u32 s48, s48, s49")
    e("s_add_u32 s48, s48, %d" % (STB[1] if nm == "g2" else STB[2]))
    emit_stats(e, vm, VAL, V_RES, 130, V_ST0, S_WS, 48)
    e("s_lshl_b32 s47, %s, 2" % s(S_L)); e("s_add_u32 s47, s47, %d" % (q + 1))
    publish(e, vm, nm + "_pub", 47, 61, V_Z, 30)
    if nm == "g4":
        e("s_branch g4_done")
        e.label("g4_final")
        e("v_and_b32 v30, 1, v4"); e("v_lshlrev_b32 v30, 1, v30")
        e("v_lshrrev_b32 v31, 1, v4"); e("v_add_u32 v30, v30, v31")
        e("v_lshlrev_b32 v30, 4, v30")
        e("v_mul_u32_u24 v31, 1280, v3")
        e("v_add_u32 v30, v30, v31")
        e("v_lshlrev_b32 v32, 3, v4")
        e("v_add_u32 v32, v32, v31")
        e("s_mul_i32 s48, s46, %d" % (16 * 1280))
        e("s_mul_i32 s49, s47, 160")
        e("s_add_u32 s48, s48, s49")
        vm2 = VM(e)
        for pr in range(2):
            vm2.vmem("buffer_store_dwordx4 %s, v30, %s, s48 offen offset:%d" % (v(SW + 4 * pr, 4), s(S_OUT, 4), pr * 64), "xst")
        vm2.vmem("buffer_store_dwordx2 %s, v32, %s, s48 offen offset:128" % (v(V_RES + 8, 2), s(S_OUT, 4)), "xst")
        e.label("g4_done")
    stamp(e, 10 if nm == "g2" else 14)

def c_g3(e, vm):
    p = PH[2]
    e("s_mul_i32 s46, %s, %d" % (s(S_L), 2 * (STB[1] - STB[0]))); e("s_add_u32 s46, s46, %d" % STB[1])
    e("s_lshl_b32 s47, %s, 13" % s(S_TEAM)); e("s_add_u32 s46, s46, s47")
    e("s_lshl_b32 s47, %s, 11" % s(S_WAVE)); e("s_add_u32 s46, s46, s47")
    e("v_lshlrev_b32 v30, 6, v3")
    e("v_lshlrev_b32 v31, 4, v4")
    e("v_add_u32 v30, v30, v31")
    e("v_lshlrev_b32 v31, 3, v4")
    e("s_mul_i32 s47, %s, 224" % s(S_MEM))
    steps = []
    for ks in range(20):
        par = ks & 1
        AB = par * 36
        slot = (ks % RB) * 8192
        g0 = p.F0 + ks * 7
        reads = [b_read(a(AB, 4), V_B3, slot), a_read(g0, a(AB + 8, 4)), b_read(a(AB + 4, 4), V_B3, slot + 1024)]
        for T in range(1, 7): reads.append(a_read(g0 + T, a(AB + 8 + 4 * T, 4)))
        mf = []
        for T in range(7):
            for b in range(2):
                acc = ACC + 8 * T + 4 * b
                cc = "0" if ks == 0 else v(acc, 4)
                needs = [0 if b == 0 else 2, 1 if T == 0 else 2 + T]
                mf.append(("v_mfma_f32_16x16x32_bf16 %s, %s, %s, %s" % (v(acc, 4), a(AB + 8 + 4 * T, 4), a(AB + 4 * b, 4), cc), needs))
        steps.append(dict(stage=ks, reads=reads, mf=mf))
    STL = 96; BIAS = 104
    def hook():
        for b in range(2):
            vm.vmem("buffer_load_dwordx4 %s, v30, %s, s46 offen offset:%d sc1" % (v(STL + 4 * b, 4), s(S_WS, 4), b * 1024), "st")
        for T in range(7):
            vm.vmem("buffer_load_dwordx2 %s, v31, %s, s47 offen offset:%d" % (v(BIAS + 2 * T, 2), s(S_B1, 4), T * 32), "bias")
    c_gemm_with_hook(e, vm, p, steps, [1] * 9, hook)
    stamp(e, 11)
    CSR = 156
    e("v_lshlrev_b32 v30, 4, v4"); e("v_add_u32 v30, %d, v30" % CS1L)
    for T in range(7): vm.lds("ds_read_b128 %s, v30 offset:%d" % (v(CSR + 4 * T, 4), T * 64), "cs")
    vm.wait(vm=["bias"])
    for b in range(2): emit_rstd2(e, STL + 4 * b, 2, RS + b, 118, True, xlane_sum_g, nmrs=122 + b)
    vm.wait(lg=["cs"])
    e("s_mov_b32 s50, 0x%x" % f32(-0.044715 * 2.302208198)); e("s_mov_b32 s51, s50")
    e("v_mov_b32 v32, 0x%x" % f32(-2.302208198)); e("v_mov_b32 v33, 0x%x" % f32(-2.302208198))
    e("s_mov_b32 s52, 1.0"); e("s_mov_b32 s53, 1.0")
    e("s_lshl_b32 s46, %s, 3" % s(S_TEAM))
    e("s_lshl_b32 s47, %s, 1" % s(S_WAVE))
    e("s_add_u32 s46, s46, s47")
    e("s_mul_i32 s46, s46, %d" % HP)
    e("s_mul_i32 s47, %s, %d" % (s(S_MEM), 14 * 256))
    e("s_add_u32 s46, s46, s47")
    e("s_mul_i32 s47, %s, %d" % (s(S_L), HB[1] - HB[0]))
    e("s_add_u32 s46, s46, s47")
    e("s_add_u32 s46, s46, %d" % HB[0])
    BFR = 124
    for T in range(7):
        bf = BFR + 4 * (T & 1)
        for h in range(2):
            e("v_lshlrev_b32 %s, 16, %s" % (v(bf + 2 * h), v(BIAS + 2 * T + h)))
            e("v_and_b32 %s, 0xffff0000, %s" % (v(bf + 2 * h + 1), v(BIAS + 2 * T + h)))
        t = 132 + 12 * (T & 1)
        for b in range(2):
            sel = "op_sel_hi:[1,0,1]" if b == 0 else "op_sel:[0,1,0] op_sel_hi:[1,1,1]"
            for h in range(2):
                e("v_pk_fma_f32 %s, %s, v[122:123], %s %s" % (v(t + 4 * b + 2 * h, 2), v(CSR + 4 * T + 2 * h, 2), v(bf + 2 * h, 2), sel))
        for b in range(2):
            A0 = ACC + 8 * T + 4 * b
            sel = "op_sel_hi:[1,0,1]" if b == 0 else "op_sel:[0,1,0] op_sel_hi:[1,1,1]"
            for h in range(2):
                e("v_pk_fma_f32 %s, %s, %s, %s %s" % (v(A0 + 2 * h, 2), v(A0 + 2 * h, 2), v(RS, 2), v(t + 4 * b + 2 * h, 2), sel))
        A0 = ACC + 8 * T
        for h in range(4): e("v_pk_mul_f32 %s, %s, %s" % (v(t + 2 * h, 2), v(A0 + 2 * h, 2), v(A0 + 2 * h, 2)))
        for h in range(4): e("v_pk_fma_f32 %s, %s, s[50:51], v[32:33]" % (v(t + 2 * h, 2), v(t + 2 * h, 2)))
        for h in range(4): e("v_pk_mul_f32 %s, %s, %s" % (v(t + 2 * h, 2), v(t + 2 * h, 2), v(A0 + 2 * h, 2)))
        for r in range(8): e("v_exp_f32 %s, %s" % (v(t + r), v(t + r)))
        for h in range(4): e("v_pk_add_f32 %s, %s, s[52:53]" % (v(t + 2 * h, 2), v(t + 2 * h, 2)))
        for r in range(8): e("v_rcp_f32 %s, %s" % (v(t + r), v(t + r)))
        e("s_nop 0")
        for h in range(4): e("v_pk_mul_f32 %s, %s, %s" % (v(t + 2 * h, 2), v(t + 2 * h, 2), v(A0 + 2 * h, 2)))
        for h in range(4): e("v_cvt_pk_bf16_f32 %s, %s, %s" % (v(t + 8 + h), v(t + 2 * h), v(t + 2 * h + 1)))
        e("s_nop 1")
        for i in range(2): e("v_permlane16_swap_b32 %s, %s" % (v(t + 8 + i), v(t + 10 + i)))
        e("s_nop 0")
        off = T * 512
        vm.vmem("buffer_store_dwordx4 %s, %s, %s, s46 offen offset:%d" % (v(t + 8, 4), v(V_H16), s(S_WS, 4), off), "hst")
    e("s_lshl_b32 s47, %s, 2" % s(S_L)); e("s_add_u32 s47, s47, 3")
    publish(e, vm, "g3_pub", 47, 61, V_Z, 30)
    stamp(e, 12)

def gen_consumer(e, nphases):
    vm = VM(e)
    e.label("c_start")
    w = S_WAVE
    e("v_mov_b32 %s, 0" % v(V_Z))
    e("v_mov_b32 %s, %d" % (v(V_MW), MW))
    e("v_and_b32 %s, 31, v1" % v(V_TOK32))
    e("v_lshrrev_b32 %s, 5, v1" % v(V_HH))
    e("v_bfe_u32 v30, v1, 4, 1")
    e("s_lshl_b32 s46, %s, 1" % s(w))
    e("v_add_u32 v30, s46, v30")
    e("v_lshlrev_b32 v30, 10, v30")
    e("v_lshlrev_b32 v31, 8, %s" % v(V_HH)); e("v_add_u32 v30, v30, v31")
    e("v_lshlrev_b32 v31, 4, v3"); e("v_add_u32 v30, v30, v31")
    e("v_add_u32 %s, %d, v30" % (v(V_B1), BRING))
    e("s_lshl_b32 s46, %s, 11" % s(w)); e("s_add_u32 s46, s46, %d" % BRING)
    e("v_add_u32 %s, s46, v5" % v(V_B3))
    e("s_and_b32 s47, %s, 1" % s(w))
    for b, reg in ((0, V_B40), (1, V_B41)):
        e("s_xor_b32 s46, %s, %d" % (s(w), b))
        e("s_lshl_b32 s46, s46, 1"); e("s_add_u32 s46, s46, s47"); e("s_lshl_b32 s46, s46, 10")
        e("s_add_u32 s46, s46, %d" % BRING)
        e("v_add_u32 %s, s46, v5" % v(reg))
    e("s_mul_i32 s46, s47, 5120")
    e("v_add_u32 v34, s46, v5")
    e("v_add_u32 v35, s46, v6")
    e("s_xor_b32 s46, s47, 1")
    e("s_mul_i32 s46, s46, %d" % (NS * 1024 - 5120))
    e("v_add_u32 v2, s46, v5")
    for reg, tw in BTWIN.items(): e("v_add_u32 %s, 0x10000, %s" % (v(tw), v(reg)))
    e("s_mul_i32 s46, %s, 5120" % s(w)); e("s_add_u32 s46, s46, %d" % XCH)
    e("v_add_u32 %s, s46, v5" % v(V_XW))
    e("s_xor_b32 s46, %s, 1" % s(w)); e("s_mul_i32 s46, s46, 5120"); e("s_add_u32 s46, s46, %d" % XCH)
    e("v_add_u32 %s, s46, v5" % v(V_XR))
    e("v_and_b32 v30, 1, v4"); e("v_lshlrev_b32 v30, 1, v30")
    e("v_lshrrev_b32 v31, 1, v4"); e("v_add_u32 v30, v30, v31")
    e("v_lshlrev_b32 v30, 8, v30")
    e("v_lshlrev_b32 v31, 4, v3")
    e("v_add_u32 %s, v30, v31" % v(V_O16))
    e("v_and_b32 v30, 1, v4"); e("v_mul_u32_u24 v30, %d, v30" % HP)
    e("v_lshrrev_b32 v32, 1, v4"); e("v_lshlrev_b32 v32, 8, v32"); e("v_add_u32 v30, v30, v32")
    e("v_add_u32 %s, v30, v31" % v(V_H16))
    e("v_lshlrev_b32 v30, 6, v3")
    e("v_mov_b32 v31, 0x%x" % OOB)
    e("v_cmp_eq_u32 vcc, 0, v4")
    e("s_nop 1")
    e("v_cndmask_b32 %s, v31, v30, vcc" % v(V_ST0))
    e("s_lshl_b32 s61, %s, 8" % s(S_TEAM)); e("s_lshl_b32 s46, %s, 4" % s(S_MEM)); e("s_add_u32 s61, s61, s46")
    e("s_lshl_b32 s46, %s, 2" % s(w)); e("s_add_u32 s61, s61, s46"); e("s_add_u32 s61, s61, %d" % FLG)
    e("s_lshl_b32 s46, %s, 3" % s(S_TEAM))
    e("s_lshr_b32 s47, %s, 3" % s(S_MEM)); e("s_lshl_b32 s47, s47, 2"); e("s_add_u32 s46, s46, s47")
    e("s_add_u32 s46, s46, %s" % s(w))
    e("s_mul_i32 s46, s46, %d" % (16 * 1280))
    e("s_and_b32 s47, %s, 7" % s(S_MEM)); e("s_mul_i32 s47, s47, 160"); e("s_add_u32 s46, s46, s47")
    e("v_mul_u32_u24 v30, 1280, v3")
    e("v_lshlrev_b32 v31, 3, v4")
    e("v_add_u32 v30, v30, v31")
    for T in range(5):
        vm.vmem("buffer_load_dwordx2 %s, v30, %s, s46 offen offset:%d" % (v(V_RES + 2 * T, 2), s(S_X, 4), T * 32), "res0")
    e("v_bfe_u32 v30, v1, 4, 1")
    e("s_lshl_b32 s46, %s, 1" % s(w))
    e("v_add_u32 v30, s46, v30")
    e("v_cmp_le_u32 vcc, 8, v3")
    e("v_cmp_eq_u32 s[48:49], 2, v30")
    e("s_and_b64 s[48:49], s[48:49], vcc")
    e("v_cmp_le_u32 vcc, 3, v30")
    e("s_or_b64 s[48:49], s[48:49], vcc")
    e("v_cmp_le_u32 vcc, 5, v30")
    e("v_mov_b32 v31, 0"); e("v_mov_b32 v32, 0")
    e("v_cndmask_b32 v31, v31, 2, s[48:49]"); e("v_cndmask_b32 v31, v31, 5, vcc")
    e("v_mov_b32 v33, 256"); e("v_mov_b32 v62, 512")
    e("v_cndmask_b32 v32, v32, v33, s[48:49]"); e("v_cndmask_b32 v32, v32, v62, vcc")
    e("v_sub_u32 v30, v30, v31")
    e("v_lshlrev_b32 v30, 6, v30"); e("v_lshlrev_b32 v31, 2, v3"); e("v_add_u32 v30, v30, v31"); e("v_add_u32 v30, v30, v32")
    e("v_mul_u32_u24 v31, 12288, %s" % v(V_HH)); e("v_add_u32 v30, v30, v31")
    e("s_mul_i32 s46, %s, 768" % s(S_MEM)); e("s_add_u32 s46, s46, 0x%x" % CSQ)
    for t in range(10):
        vm.vmem("buffer_load_dword %s, v30, %s, s46 offen" % (v(40 + t), s(S_WS, 4)), "csq")
        if t < 9: e("s_add_u32 s46, s46, 24576")
    e("s_lshl_b32 s46, %s, 7" % s(w)); e("s_add_u32 s46, s46, %d" % CSL)
    e("v_lshlrev_b32 v33, 2, %s" % v(V_TOK32)); e("v_add_u32 v33, s46, v33")
    vm.wait(vm=["csq"])
    for t in range(1, 10): e("v_add_f32 v40, v40, %s" % v(40 + t))
    xlane_sum_32(e, 40, 60)
    e("s_mov_b32 exec_hi, 0")
    e("ds_write_b32 v33, v40")
    e("s_mov_b64 exec, -1")
    e("s_waitcnt lgkmcnt(0)")
    e("s_mov_b32 %s, 0" % s(S_L))
    e.label("c_layer")
    stamp(e, 0)
    fns = [lambda: c_g1(e, vm), lambda: c_gres(e, vm, 1), lambda: c_g3(e, vm), lambda: c_gres(e, vm, 3)]
    for q in range(min(nphases, 4)):
        if nphases > 4 and nphases < 8 and q >= nphases - 4:
            e("s_cmp_eq_u32 %s, 1" % s(S_L)); e("s_cbranch_scc1 c_end")
        fns[q]()
    stamp(e, 15)
    stamp_flush(e, 16, S_L)
    if nphases > 4:
        vm.wait_all()
        e("s_add_u32 %s, %s, 1" % (s(S_L), s(S_L)))
        e("s_cmp_lt_u32 %s, 2" % s(S_L))
        e("s_cbranch_scc1 c_layer")
    e.label("c_end")
    if nphases > 4 and nphases < 8: stamp_flush(e, 16, S_L)
    e("s_waitcnt vmcnt(0)")
    e("s_endpgm")

def gen_main(e, nphases):
    name = NAME + "_kernel"
    header(e, name)
    P.gen_prologue(e, sys.modules[__name__])
    e("s_cmp_lt_u32 %s, 4" % s(S_WAVE))
    e("s_cbranch_scc1 c_start")
    e("s_cmp_lt_u32 %s, 6" % s(S_WAVE))
    e("s_cbranch_scc1 pa_start")
    e("s_branch pb_start")
    return name

STATIC_ROLE = False

def build(nphases=8):
    m = Emit()
    name = gen_main(m, nphases)
    streams = []
    for fn in (gen_consumer, gen_pa, gen_pb):
        x = Emit(); fn(x, nphases); streams.append(x)
    tail = Emit(); tail.label("main_done"); tail("s_endpgm")
    hdr = open("cdna_kernels/%s.s.ref" % NAME).read().split("; Override launch geometry")[0]
    out = hdr
    out += "; @launch grid=(256,1,1) block=(512,1,1) lds=%d\n" % LDS_TOTAL
    out += '.amdgcn_target "amdgcn-amd-amdhsa--gfx950"\n.text\n'
    nerr = 0
    for nm, x in (("main", m), ("cons", streams[0]), ("pa", streams[1]), ("pb", streams[2])):
        errs = Checker().run(x.lines, nm)
        errs = [t for t in errs if "v39" not in t]
        for t in errs[:30]: print("HAZARD", t, file=sys.stderr)
        nerr += len(errs)
    print("hazard errors:", nerr, file=sys.stderr)
    allcode = m.lines
    for x in streams: allcode += ["  .p2align 6"] + x.lines
    allcode += tail.lines
    out += "\n".join(allcode) + "\n"
    out += descriptor(name, NVG, ACC_OFF)
    return out

if __name__ == "__main__":
    if "--prof" in sys.argv:
        PROF = True; P.PROF = True; sys.argv.remove("--prof")
    if "--slow" in sys.argv:
        FORCE_SLOW = True; P.FORCE_SLOW = True; sys.argv.remove("--slow")
    if "--static" in sys.argv:
        P.FAKEX = True; sys.argv.remove("--static")
    n = int(sys.argv[2]) if len(sys.argv) > 2 else 8
    open(sys.argv[1], "w").write(build(n))
```
